```python
import torch

def _softmax(x, axis=-1):
    return torch.softmax(x, dim=axis)

def _gelu(x):
    return torch.nn.functional.gelu(x, approximate='tanh')

def _silu(x):
    return torch.nn.functional.silu(x)

def _sigmoid(x):
    return torch.sigmoid(x)

def _layernorm(x, axis=-1, eps=1e-05):
    m = x.mean(dim=axis, keepdim=True)
    v = x.var(dim=axis, keepdim=True, unbiased=False)
    return (x - m) / torch.sqrt(v + eps)

def _scatter_add(tgt, idx, src, axis=0):
    return tgt.clone().index_add_(axis, idx, src)

def _segment_sum(src, seg, n):
    out = torch.zeros((n,) + src.shape[1:], dtype=src.dtype)
    return out.index_add_(0, seg, src)

def _pad(x, pw):
    flat = tuple((v for pair in reversed(pw) for v in pair))
    return torch.nn.functional.pad(x, flat)
kernel_name = 'standalone__ragged_sequences_varlen_flash_attn__ragged'

def setup_inputs():

    _w = lambda a: (lambda t: t.to(torch.bfloat16) if t.is_floating_point() else t)(torch.as_tensor(a))
    cu = torch.tensor([0, 506, 648, 1109, 1416, 1494, 1644, 1941, 2399], dtype=torch.int64)
    T = int(cu[-1])
    Hq, Hkv, D = (16, 8, 192)
    assert Hq % Hkv == 0
    return {'q': _w((lambda *s: torch.randn(*s, dtype=torch.bfloat16) * 0.8)(T, Hq, D)), 'k': _w((lambda *s: torch.randn(*s, dtype=torch.bfloat16) * 0.8)(T, Hkv, D)), 'v': _w((lambda *s: torch.randn(*s, dtype=torch.bfloat16) * 0.05)(T, Hkv, D)), 'cu': _w(cu)}

def reference(q, k, v, cu):
    T, Hq, D = q.shape
    Hkv = k.shape[1]
    rep = Hq // Hkv
    scale = D ** (-0.5)
    outs = []
    for i in range(len(cu) - 1):
        s, e = (int(cu[i]), int(cu[i + 1]))
        L = e - s
        qi = q[s:e].clone()
        ki = (lambda x, n, axis: torch.repeat_interleave(x, n, dim=axis))(k[s:e], rep, axis=1)
        vi = (lambda x, n, axis: torch.repeat_interleave(x, n, dim=axis))(v[s:e], rep, axis=1)
        logits = torch.einsum('qhd,khd->hqk', qi, ki) * scale
        ar = torch.arange(L)
        neg = (lambda x, dt: x.to(dt))(ar[None, :] > ar[:, None], logits.dtype) * -1000000000.0
        p = _softmax(logits + neg[None, :, :], axis=-1)
        outs.append(torch.einsum('hqk,khd->qhd', p, vi))
    return torch.concatenate(outs, axis=0)
```

```python
import re

def vr(lo, n=1):
    return f"v{lo}" if n == 1 else f"v[{lo}:{lo+n-1}]"
def sr(lo, n=1):
    return f"s{lo}" if n == 1 else f"s[{lo}:{lo+n-1}]"

_R = re.compile(r"^-?\|?([vs])(?:(\d+)|\[(\d+):(\d+)\])\|?$")
def regs_of(tok):
    tok = tok.strip()
    if tok in ("vcc",): return {("s", 106), ("s", 107)}
    if tok == "m0": return {("s", 124)}
    if tok == "exec": return {("s", 126), ("s", 127)}
    m = _R.match(tok)
    if not m: return set()
    f = m.group(1)
    if m.group(2) is not None: return {(f, int(m.group(2)))}
    return {(f, i) for i in range(int(m.group(3)), int(m.group(4)) + 1)}

TRANS = ("v_exp_f32", "v_rcp_f32", "v_log_f32", "v_rsq_f32", "v_sqrt_f32")

class I:
    def __init__(self, text, comment=""):
        self.text = text.strip(); self.comment = comment
        parts = self.text.split(None, 1)
        self.mn = parts[0]
        rest = parts[1] if len(parts) > 1 else ""
        ops = []
        for o in rest.split(","):
            o = o.strip()
            if not o: continue
            ops.append(o.split()[0])
        self.ops = ops
        self.mods = rest
        mn = self.mn
        self.wr, self.rd = set(), set()
        self.kind = "other"
        R = [regs_of(o) for o in ops]
        if mn.endswith(":"):
            self.kind = "label"
        elif mn.startswith("v_mfma"):
            self.kind = "mfma"; self.wr = R[0]; self.A = R[1]; self.B = R[2]; self.C = R[3]
            self.rd = R[1] | R[2] | R[3]
        elif mn.startswith("v_cmp"):
            self.kind = "valu"; self.wr = R[0]; self.rd = set().union(*R[1:])
        elif mn.startswith("v_permlane32_swap") or mn.startswith("v_swap"):
            self.kind = "valu"; self.wr = R[0] | R[1]; self.rd = R[0] | R[1]
        elif mn.startswith("v_readfirstlane") or mn.startswith("v_readlane"):
            self.kind = "valu"; self.wr = R[0]; self.rd = set().union(*R[1:])
        elif mn.startswith("v_"):
            self.kind = "valu"; self.wr = R[0]; self.rd = set().union(*R[1:]) if len(R) > 1 else set()
            if mn.startswith("v_fmac") : self.rd |= R[0]
            if mn.startswith("v_cndmask") and len(ops) == 3: self.rd |= regs_of("vcc")
        elif mn.startswith("ds_read"):
            self.kind = "dsr"; self.wr = R[0]; self.rd = R[1]
        elif mn.startswith("ds_write"):
            self.kind = "dsw"; self.rd = set().union(*R)
        elif mn.startswith("buffer_load") or mn.startswith("global_load"):
            self.kind = "vmem"
            if " lds" in (" " + rest):
                self.rd = set().union(*R) | regs_of("m0"); self.lds = True
            else:
                self.wr = R[0]; self.rd = set().union(*R[1:])
        elif mn.startswith("buffer_store") or mn.startswith("global_store") or mn.startswith("buffer_atomic"):
            self.kind = "vstore"; self.rd = set().union(*R)
            self.data = R[0] if mn.startswith("buffer") else R[1]
        elif mn == "s_nop":
            self.kind = "nop"
        elif mn == "s_waitcnt":
            self.kind = "wait"
        elif mn.startswith("s_cbranch") or mn == "s_branch":
            self.kind = "branch"
        elif mn.startswith("s_cmp") or mn in ("s_barrier", "s_endpgm", "s_setprio", "s_sleep"):
            self.kind = "salu"; self.rd = set().union(*R) if R else set()
        elif mn.startswith("s_load") or mn.startswith("s_memrealtime") or mn.startswith("s_memtime"):
            self.kind = "smem"; self.wr = R[0]; self.rd = set().union(*R[1:]) if len(R) > 1 else set()
        elif mn.startswith("s_"):
            self.kind = "salu"; self.wr = R[0]; self.rd = set().union(*R[1:]) if len(R) > 1 else set()
        else:
            raise ValueError("unknown instr " + text)
        self.trans = mn.split("_e")[0] in TRANS
    def states(self):
        if self.kind == "label": return 0
        if self.kind == "nop": return int(self.ops[0], 0) + 1
        return 1
    def __str__(self):
        if self.kind == "label": return self.text
        return "  " + self.text + (("    ; " + self.comment) if self.comment else "")

class LW:
    def __init__(self, need):
        self.need = set()
        for t in need: self.need |= regs_of(t)
        self.n = 15; self.kind = "wait"; self.mn = "s_waitcnt"; self.wr = set(); self.rd = set(); self.trans = False
        self.text = "lw"
    def states(self): return 1
    def __str__(self): return f"  s_waitcnt lgkmcnt({self.n})"

def resolve_lgkm(paths):
    for p in paths:
        out = []
        for ins in p:
            if isinstance(ins, LW):
                idx = -1
                for i, w in enumerate(out):
                    if w & ins.need: idx = i
                n = len(out) - 1 - idx
                if idx >= 0: ins.n = min(ins.n, n)
                keep = min(ins.n, len(out)); out = out[len(out) - keep:] if keep else []
            elif ins.kind in ("dsr", "dsw"):
                out.append(set(ins.wr))
            elif ins.kind == "smem":
                out.append(set(ins.wr) | {("smem", 0)})
            elif ins.kind == "wait" and "lgkmcnt" in ins.text:
                n = int(re.search(r"lgkmcnt\((\d+)\)", ins.text).group(1))
                out = out[len(out) - n:] if n else []
    for p in paths:
        out = []
        for k, ins in enumerate(p):
            if isinstance(ins, LW):
                n = ins.n; out = out[len(out) - n:] if n and len(out) > n else ([] if not n else out)
                continue
            if ins.kind == "wait" and "lgkmcnt" in ins.text:
                n = int(re.search(r"lgkmcnt\((\d+)\)", ins.text).group(1))
                out = out[len(out) - n:] if n and len(out) > n else ([] if not n else out)
                continue
            touched = ins.rd | ins.wr
            for w in out:
                if w & touched:
                    raise AssertionError(f"lgkm violation at {ins} (touches outstanding {sorted(w & touched)[:4]})")
            if ins.kind in ("dsr", "dsw"): out.append(set(ins.wr))
            elif ins.kind == "smem": out.append(set(ins.wr))

def check_hazards(path, name=""):
    errs = []
    hist = []
    for ins in path:
        if ins.kind == "label": continue
        d = 0
        for prev in reversed(hist):
            if d > 20: break
            def need(n, why):
                if d < n: errs.append(f"[{name}] {why}: need {n} have {d}: '{prev.text}' -> '{ins.text}'")
            k, pk = ins.kind, prev.kind
            vw = {r for r in prev.wr if r[0] == "v"}
            sw = {r for r in prev.wr if r[0] == "s"}
            if pk == "valu":
                if k == "mfma" and vw & ins.rd: need(2, "valu->mfma")
                if prev.trans and k == "valu" and not ins.trans and vw & ins.rd: need(1, "trans->valu")
                if prev.trans and k == "valu" and ins.trans and vw & ins.rd: need(1, "trans->trans(safe)")
                if ins.mn.startswith("v_permlane") and vw & ins.rd: need(2, "valu->permlane")
                if (ins.mn.startswith("v_readfirstlane") or ins.mn.startswith("v_readlane")) and vw & ins.rd: need(1, "valu->readlane")
                if k == "valu" and sw & ins.rd: need(2, "valu sgpr->valu")
                if k in ("vmem", "vstore") and sw & ins.rd: need(5, "valu sgpr->vmem")
                if k in ("salu", "branch") and sw & ins.rd: need(1, "valu sgpr->salu(pad)")
            if pk == "mfma":
                if k == "mfma":
                    if prev.wr & (ins.A | ins.B): need(12, "mfma D->A/B")
                    if prev.wr & ins.C and prev.wr != ins.C: need(10, "mfma D->C overlap")
                    if prev.wr & ins.wr and prev.wr != ins.C: need(12, "mfma D->D waw")
                elif k in ("valu", "dsr", "dsw", "vmem", "vstore"):
                    if prev.wr & (ins.rd | ins.wr): need(12, "mfma D->use")
                    if k == "valu" and prev.C & ins.wr: need(7, "mfma C WAR")
            if pk == "salu" and ("s", 124) in prev.wr and k == "vmem" and getattr(ins, "lds", False): need(1, "m0->ldsdma")
            if pk == "salu" and ("s", 124) in prev.wr and ins.mn.startswith("s_movrel"): need(1, "m0->movrel")
            if pk == "vstore" and ("x4" in prev.mn or "x3" in prev.mn):
                if prev.data & ins.wr: need(2 if k == "valu" else 1, "store data WAR")
            d += prev.states()
        hist.append(ins)
        if len(hist) > 40: hist.pop(0)
    return errs
```

```python
KNAME = "standalone__ragged_sequences_varlen_flash_attn__ragged_kernel"
def wrap(body, grid, block, lds, vgpr=256, sgpr=102, accum=None):
    if accum is None: accum = min(256, (vgpr + 3) // 4 * 4)
    return f"""; @launch grid=({grid},1,1) block=({block},1,1) lds={lds}
.amdgcn_target "amdgcn-amd-amdhsa--gfx950"
.text
.globl {KNAME}
.p2align 8
.type {KNAME},@function
{KNAME}:
{body}
.section .rodata,"a"
.p2align 6
.amdhsa_kernel {KNAME}
  .amdhsa_next_free_vgpr {vgpr}
  .amdhsa_next_free_sgpr {sgpr}
  .amdhsa_accum_offset {accum}
  .amdhsa_group_segment_fixed_size 0
  .amdhsa_kernarg_size 56
  .amdhsa_user_sgpr_count 2
  .amdhsa_user_sgpr_kernarg_segment_ptr 1
  .amdhsa_system_sgpr_workgroup_id_x 1
.end_amdhsa_kernel
"""
```

```python
import sys, math, struct
from asmlib import *
from mk_common import wrap

CU = [0, 506, 648, 1109, 1416, 1494, 1644, 1941, 2399]
def f32bits(x): return struct.unpack("<I", struct.pack("<f", x))[0]

class Cfg:
    LA = 6
    stamps = False
    stflag = ""
    thr = 8.0
    prio = 0

def make_jobs():
    jobs = []
    for i in range(8):
        s, L = CU[i], CU[i+1] - CU[i]
        nt = (L + 31) // 32
        for b in range((L + 63) // 64):
            jobs.append((min(2*b+2, nt), s, L, b))
    jobs.sort(key=lambda j: -j[0])
    return jobs

vO = 160; vQ = 112; vS = [80, 96]; vRing = 48; vP = 40
vK = [1, 2, 3, 4]; vVe, vVo = 5, 6; vM, vL, vF, vMx, vT0, vT1, vNeg = 7, 8, 9, 10, 11, 12, 13
vLane, vRow, vH, vX = 14, 15, 16, 17
vT = list(range(18, 40))
STG = 24576; VOFF = 12288; QBASE = 98304; TOG = 0xC000
sC = 41
sMask = 64

def gen(cfg):
    jobs = make_jobs(); NJ = len(jobs)
    LA = cfg.LA
    def ring(n): return vRing + 4 * (n % 8)
    def kread(n, s, imm): return [I(f"ds_read_b128 {vr(ring(n),4)}, v{vK[s%4]} offset:{imm + (s//4)*128}")]
    def vread(n, idx, imm):
        s, dt = idx // 6, idx % 6
        a = vVe if dt % 2 == 0 else vVo
        return [I(f"ds_read_b64_tr_b16 {vr(ring(n)+2*u,2)}, v{a} offset:{imm + VOFF + (16*s+8*u)*384 + 64*dt}") for u in range(2)]
    def qk(n, s, S): return I(f"v_mfma_f32_32x32x16_bf16 {vr(S,16)}, {vr(ring(n),4)}, {vr(vQ+4*s,4)}, " + ("0" if s == 0 else vr(S,16)))
    def pv(n, idx):
        s, dt = idx // 6, idx % 6
        return I(f"v_mfma_f32_32x32x16_bf16 {vr(vO+16*dt,16)}, {vr(ring(n),4)}, {vr(vP+4*s,4)}, {vr(vO+16*dt,16)}")
    def cost(i): return 8 if i.trans else 4
    def Elist(S):
        F = [I(f"v_fma_f32 v{S+r}, v{S+r}, s{sC}, -v{vM}") for r in range(16)]
        X = [I(f"v_exp_f32 v{S+r}, v{S+r}") for r in range(16)]
        A = [I(f"v_add_f32 v{vL}, v{vL}, v{S+r}") for r in range(16)]
        C = [I(f"v_cvt_pk_bf16_f32 v{vP+k}, v{S+2*k}, v{S+2*k+1}") for k in range(8)]
        out = [F[0], F[1]]
        for r in range(16):
            out.append(X[r])
            if r + 2 < 16: out.append(F[r+2])
            if r >= 1: out.append(A[r-1])
            if r >= 2 and r % 2 == 0: out.append(C[(r-2)//2])
        out += [I("s_nop 0"), A[15], C[7]]
        return out
    def Mlist(S, tag):
        o = [I(f"v_max3_f32 v{vMx}, v{S}, v{S+1}, v{S+2}"), I(f"v_max3_f32 v{vT0}, v{S+3}, v{S+4}, v{S+5}")]
        o += [I(f"v_max3_f32 v{vMx}, v{vMx}, v{S+6}, v{S+7}"), I(f"v_max3_f32 v{vT0}, v{vT0}, v{S+8}, v{S+9}")]
        o += [I(f"v_max3_f32 v{vMx}, v{vMx}, v{S+10}, v{S+11}"), I(f"v_max3_f32 v{vT0}, v{vT0}, v{S+12}, v{S+13}")]
        o += [I(f"v_max3_f32 v{vMx}, v{vMx}, v{S+14}, v{S+15}"), I(f"v_max_f32 v{vMx}, v{vMx}, v{vT0}")]
        if tag is not None:
            o += [I(f"v_fma_f32 v{vT0}, v{vMx}, s{sC}, -v{vM}"), I(f"v_cmp_lt_f32 vcc, 0x{f32bits(cfg.thr):08x}, v{vT0}"),
                  I(f"s_cbranch_vccnz RARE1_{tag}"), I(f"RET1_{tag}:")]
        return o
    def masklist(S):
        return [I(f"v_cndmask_b32 v{S+r}, v{S+r}, v{vNeg}, {sr(sMask+2*r,2)}") for r in range(16)]
    def rare1(tag):
        return [I(f"RARE1_{tag}:"), I(f"v_mov_b32 v{vT1}, v{vMx}"), I("s_nop 1"), I(f"v_permlane32_swap_b32 v{vMx}, v{vT1}"),
                I(f"v_max_f32 v{vMx}, v{vMx}, v{vT1}"), I(f"v_mul_f32 v{vMx}, s{sC}, v{vMx}"), I(f"v_max_f32 v{vMx}, v{vMx}, v{vM}"),
                I(f"v_sub_f32 v{vF}, v{vM}, v{vMx}"), I(f"v_exp_f32 v{vF}, v{vF}"), I(f"v_mov_b32 v{vM}, v{vMx}"),
                I(f"v_mul_f32 v{vL}, v{vL}, v{vF}"), I(f"s_branch RET1_{tag}")]
    def rare2(tag):
        return [I(f"RARE2_{tag}:"), I("s_nop 15")] + [I(f"v_mul_f32 v{vO+i}, v{vO+i}, v{vF}") for i in range(96)] + [I("s_nop 1"), I(f"s_branch RET2_{tag}")]

    def spread(items, g0, g1, gaps):
        tot = sum(cost(i) if i.kind != "label" else 0 for i in items); n = g1 - g0 + 1
        acc = 0
        for it in items:
            c = cost(it) if it.kind != "label" else 0
            g = g0 + min(n - 1, int((acc + c / 2) * n / tot)) if it.kind != "label" else lastg
            gaps[g].append(it); lastg = g; acc += c

    def phase(mf, reads, gaps, n0):
        out = []
        for g in range(12):
            if g % 2 == 0:
                out.append(LW([vr(ring(n0+g),4), vr(ring(n0+g+1),4)]))
            out.append(mf[g])
            out += reads[g]
            out += gaps[g]
        return out

    def Esplit(S, c1):
        E = Elist(S); acc = 0; k = 0
        while acc < c1: acc += cost(E[k]); k += 1
        return E[:k], E[k:]
    C1 = 104
    def Ehalf(S):
        E = Elist(S)
        k = [i for i, x in enumerate(E) if x.text.startswith(f"v_cvt_pk_bf16_f32 v{vP+3},")][0] + 1
        return E[:k], E[k:]
    def Esplit3(S):
        p1, rest = Esplit(S, C1)
        tot = sum(cost(i) for i in rest); acc = 0; k = 0
        while acc < tot * 12 / 14: acc += cost(rest[k]); k += 1
        return p1, rest[:k], rest[k:]

    def phaseA(par):
        cur, nxt = vS[par], vS[1-par]
        imm = STG * par
        mf = [qk(s, s, nxt) for s in range(12)]
        reads = [[] for _ in range(12)]
        for g in range(12):
            n = g + LA
            reads[g] = kread(n, n, imm) if n < 12 else vread(n, n - 12, imm)
        gaps = [[] for _ in range(12)]
        _, pa, _ = Esplit3(cur)
        spread(pa, 0, 11, gaps)
        if par == 1:
            for i in range(4): gaps[7 + i].append(I(f"v_xor_b32 v{vK[i]}, 0x{TOG:x}, v{vK[i]}"))
        gaps[10].append(I("s_sub_u32 s43, s43, 1"))
        return phase(mf, reads, gaps, 0)
    def phaseB(par, tail):
        cur, nxt = vS[par], vS[1-par]
        imm = STG * par
        tag = f"{'T' if tail else 'L'}{par}"
        mf = [pv(12 + i, i) for i in range(12)]
        reads = [[] for _ in range(12)]
        gaps = [[] for _ in range(12)]
        nimm = STG * (1 - par)
        for g in range(12):
            n = 12 + g + LA
            if n < 24: reads[g] = vread(n, n - 12, imm)
            else: reads[g] = vread(n, n - 24, nimm) if tail else kread(n, n - 24, nimm)
        first = 12 - LA
        pre = []
        if par == 1:
            pre = [I(f"v_xor_b32 v{vVe}, 0x{TOG:x}, v{vVe}"), I(f"v_xor_b32 v{vVo}, 0x{TOG:x}, v{vVo}")]
        reads[first] = pre + [I("s_barrier")] + reads[first]
        _, _, pb = Esplit3(cur)
        spread(pb, 0, 1, gaps)
        if not tail:
            p1, _, _ = Esplit3(nxt)
            spread(Mlist(nxt, tag), 2, 3, gaps)
            spread(p1, 4, 11, gaps)
        else:
            p1, _ = Ehalf(nxt)
            spread(masklist(nxt) + Mlist(nxt, tag), 2, 5, gaps)
            spread(p1, 6, 11, gaps)
        out = phase(mf, reads, gaps, 12)
        out += [I(f"s_cbranch_vccnz RARE2_{tag}"), I(f"RET2_{tag}:")]
        return out
    def phaseF(par):
        S = vS[1-par]; imm = STG * (1 - par)
        mf = [pv(24 + i, i) for i in range(12)]
        reads = [[] for _ in range(12)]
        for g in range(12):
            n = 24 + g + LA
            if n < 36: reads[g] = vread(n, n - 24, imm)
        gaps = [[] for _ in range(12)]
        _, p2 = Ehalf(S)
        spread(p2, 0, 4, gaps)
        fin = [I(f"v_mov_b32 v{vT1}, v{vL}"), I("s_nop 1"), I(f"v_permlane32_swap_b32 v{vL}, v{vT1}"), I(f"v_add_f32 v{vL}, v{vL}, v{vT1}"),
               I(f"v_rcp_f32 v{vF}, v{vL}")]
        spread(fin, 6, 8, gaps)
        return [I(f"FIN_{par}:"), I("s_nop 1")] + phase(mf, reads, gaps, 24)

    E = []
    a = lambda t, c="": E.append(I(t, c))
    a("s_load_dwordx8 s[4:11], s[0:1], 0")
    a("s_load_dwordx2 s[12:13], s[0:1], 32")
    if cfg.stamps:
        a("s_load_dwordx2 s[14:15], s[0:1], 48")
        a("s_memrealtime s[56:57]")
    a("s_lshr_b32 s34, s2, 3"); a("s_and_b32 s33, s2, 7")
    a(f"s_cmp_ge_u32 s34, {NJ}"); a("s_cbranch_scc1 L_END")
    a("v_lshrrev_b32 v1, 6, v0"); a(f"v_and_b32 v{vLane}, 63, v0")
    a("s_mov_b32 m0, s34")
    a("v_readfirstlane_b32 s32, v1")
    for i, (n, s, L, b) in enumerate(jobs):
        a(f"s_mov_b32 s{58+i}, 0x{(s | (L << 12) | (b << 22)):x}")
    a("s_movrels_b32 s34, s58")
    a("s_and_b32 s35, s34, 0xfff", "seq start"); a("s_bfe_u32 s36, s34, 0xa000c", "L"); a("s_lshr_b32 s37, s34, 22", "b")
    a("s_add_u32 s38, s35, s36", "seq end")
    a("s_add_u32 s39, s36, 31"); a("s_lshr_b32 s39, s39, 5"); a("s_lshl_b32 s42, s37, 1"); a("s_add_u32 s40, s42, 2")
    a("s_min_u32 s39, s39, s40", "N")
    a("s_lshl_b32 s40, s37, 6"); a("s_add_u32 s40, s40, s35", "q0")
    a("s_mul_i32 s44, s40, 6144"); a("s_mul_i32 s40, s33, 768"); a("s_add_u32 s44, s44, s40", "Q/O offset of block, head pair")
    a("s_cmp_ge_u32 s32, 4"); a("s_cbranch_scc1 L_LOADER")

    P0 = []
    a = lambda t, c="": P0.append(I(t, c))
    a("s_lshr_b32 s45, s32, 1", "th"); a("s_and_b32 s46, s32, 1", "hh")
    a("s_add_u32 s40, s42, s45", "tile index"); a("s_lshl_b32 s47, s40, 5"); a("s_cmp_ge_u32 s47, s36"); a("s_cbranch_scc1 L_END")
    a("s_add_u32 s40, s40, 1", "N_w")
    a(f"s_mul_i32 s45, s45, {32*6144}"); a("s_mul_i32 s46, s46, 384"); a("s_add_u32 s44, s44, s45"); a("s_add_u32 s44, s44, s46")
    if cfg.prio: a(f"s_setprio {cfg.prio}")
    a(f"v_and_b32 v{vRow}, 31, v{vLane}"); a(f"v_lshrrev_b32 v{vH}, 5, v{vLane}"); a(f"v_bfe_u32 v{vX}, v{vLane}, 1, 3")
    a(f"v_mul_u32_u24 v{vT[0]}, 384, v{vRow}")
    a(f"v_xor_b32 v{vT[1]}, v{vH}, v{vX}"); a(f"v_lshl_add_u32 v{vT[1]}, v{vT[1]}, 4, v{vT[0]}", "K lane base")
    a(f"s_mul_i32 s45, s32, 12288"); a(f"s_add_u32 s45, s45, {QBASE}", "wave staging base")
    for i in range(4):
        a(f"v_xor_b32 v{vT[2+i]}, {i<<5}, v{vT[1]}")
    for i in range(4):
        a(f"v_add_u32 v{vK[i]}, 0x{TOG:x}, v{vT[2+i]}")
        a(f"v_add_u32 v{vT[2+i]}, s45, v{vT[2+i]}")
    a(f"v_bfe_u32 v{vT[6]}, v{vLane}, 2, 2", "r"); a(f"v_lshl_add_u32 v{vT[7]}, v{vH}, 2, v{vT[6]}", "4h+r")
    a(f"v_mul_u32_u24 v{vT[7]}, 384, v{vT[7]}")
    a(f"v_bfe_u32 v{vT[8]}, v{vLane}, 4, 1"); a(f"v_lshl_add_u32 v{vT[7]}, v{vT[8]}, 5, v{vT[7]}")
    a(f"v_and_b32 v{vT[8]}, 3, v{vLane}"); a(f"v_lshl_add_u32 v{vT[7]}, v{vT[8]}, 3, v{vT[7]}")
    a(f"v_bfe_u32 v{vT[8]}, v{vLane}, 3, 1", "y"); a(f"v_lshlrev_b32 v{vT[8]}, 6, v{vT[8]}")
    a(f"v_add_u32 v{vVe}, v{vT[7]}, v{vT[8]}"); a(f"v_sub_u32 v{vVo}, v{vT[7]}, v{vT[8]}")
    a(f"s_mov_b32 s{sC}, 0x{f32bits(math.log2(math.e) / math.sqrt(192)):08x}")
    a(f"v_mov_b32 v{vNeg}, 0xff800000"); a(f"v_mov_b32 v{vL}, 0")
    for r in range(16):
        g, i = r >> 2, r & 3
        lo = sum(1 << l for l in range(32) if 8*g + i > l); hi = sum(1 << l for l in range(32) if 8*g + 4 + i > l)
        a(f"s_mov_b32 s{sMask+2*r}, 0x{lo:x}"); a(f"s_mov_b32 s{sMask+2*r+1}, 0x{hi:x}")
    for i in range(96): a(f"v_mov_b32 v{vO+i}, 0")
    a("s_sub_u32 s43, s40, 2")
    a("s_waitcnt lgkmcnt(0)")
    a("s_mov_b32 s28, s12"); a("s_mov_b32 s29, s13"); a("s_mul_i32 s30, s38, 6144"); a("s_mov_b32 s31, 0x20000")
    a("s_barrier", "B_init: Q and K0 landed")
    for s in range(12):
        if s < LA: P0 += kread(s + 12, s, STG)
        a(f"ds_read_b128 {vr(vQ+4*s,4)}, v{vT[2+s%4]} offset:{(s//4)*128}")
    if True:
        for s in range(12):
            P0.append(LW([vr(ring(12+s),4), vr(vQ+4*s,4)]))
            P0.append(qk(12 + s, s, vS[0]))
            if s + LA < 12: P0 += kread(12 + s + LA, s + LA, STG)
    for i in range(4): a(f"v_xor_b32 v{vK[i]}, 0x{TOG:x}, v{vK[i]}")
    a("s_cmp_eq_u32 s40, 1")
    a("s_barrier", "stage 0 landed")
    a("s_cbranch_scc1 L_ONE")
    P1 = []
    def m0list():
        o = Mlist(vS[0], None)
        o += [I(f"v_mov_b32 v{vT1}, v{vMx}"), I("s_nop 1"), I(f"v_permlane32_swap_b32 v{vMx}, v{vT1}"),
              I(f"v_max_f32 v{vMx}, v{vMx}, v{vT1}"), I(f"v_mul_f32 v{vM}, s{sC}, v{vMx}")]
        return o
    for s in range(LA): P1 += kread(s, s, 0)
    P1 += [I("s_nop 3")] + m0list() + Esplit3(vS[0])[0]
    ONE = [I("L_ONE:")]
    for i in range(LA): ONE += vread(24 + i, i, 0)
    ONE += masklist(vS[0]) + m0list() + Ehalf(vS[0])[0] + [I("s_branch FIN_1")]

    A0, A1 = phaseA(0), phaseA(1)
    B0, B1 = phaseB(0, False), phaseB(1, False)
    T0, T1 = phaseB(0, True), phaseB(1, True)
    F0, F1 = phaseF(0), phaseF(1)
    LOOP = [I("L_LOOP:")] + A0 + [I("s_cbranch_scc1 TAIL_0")] + B0 + A1 + [I("s_cbranch_scc1 TAIL_1")] + B1 + [I("s_branch L_LOOP")]
    TAIL1 = [I("TAIL_1:")] + T1 + F1 + [I("s_branch L_EPI")]
    TAIL0 = [I("TAIL_0:")] + T0 + F0

    EP = [I("L_EPI:")]
    a = lambda t, c="": EP.append(I(t, c))
    a("s_cmp_eq_u32 s40, s39"); a("s_cbranch_scc1 L_NOXB"); a("s_barrier"); a("L_NOXB:")
    a(f"v_mul_u32_u24 v{vT[0]}, 384, v{vRow}"); a(f"v_lshl_add_u32 v{vT[0]}, v{vX}, 4, v{vT[0]}"); a(f"v_lshl_add_u32 v{vT[0]}, v{vH}, 3, v{vT[0]}")
    a(f"v_add_u32 v{vT[0]}, s45, v{vT[0]}")
    for b in range(1, 8): a(f"v_xor_b32 v{vT[b]}, {b<<4}, v{vT[0]}")
    a(f"v_lshlrev_b32 v{vT[8]}, 4, v{vLane}"); a(f"v_add_u32 v{vT[8]}, s45, v{vT[8]}")
    for c in range(24):
        dt, g = c // 4, c % 4; o = vO + 16*dt + 4*g
        a(f"v_pk_mul_f32 {vr(o,2)}, {vr(o,2)}, {vr(vF-1,2)} op_sel:[0,1] op_sel_hi:[1,1]")
        a(f"v_pk_mul_f32 {vr(o+2,2)}, {vr(o+2,2)}, {vr(vF-1,2)} op_sel:[0,1] op_sel_hi:[1,1]")
        a(f"v_cvt_pk_bf16_f32 v{o}, v{o}, v{o+1}"); a(f"v_cvt_pk_bf16_f32 v{o+1}, v{o+2}, v{o+3}")
        a(f"ds_write_b64 v{vT[c%8]}, {vr(o,2)} offset:{(c//8)*128}")
    for t in range(3):
        p, r, sl, x = vT[12], vT[13], vT[14], vT[15]
        a(f"v_add_u32 v{p}, {64*t}, v{vLane}"); a(f"v_mul_u32_u24 v{r}, 2731, v{p}"); a(f"v_lshrrev_b32 v{r}, 16, v{r}")
        a(f"v_mul_u32_u24 v{sl}, 24, v{r}"); a(f"v_sub_u32 v{sl}, v{p}, v{sl}")
        a(f"v_lshrrev_b32 v{x}, 1, v{r}"); a(f"v_xor_b32 v{sl}, v{sl}, v{x}")
        a(f"v_mul_u32_u24 v{r}, 6144, v{r}"); a(f"v_lshl_add_u32 v{vT[9+t]}, v{sl}, 4, v{r}")
        a(f"v_xor_b32 v{vT[16+t]}, 64, v{vT[9+t]}")
    a("s_waitcnt lgkmcnt(0)")
    for i in range(12): a(f"ds_read_b128 {vr(vQ+4*i,4)}, v{vT[8]} offset:{1024*i}")
    for i in range(12):
        jj, t = i // 3, i % 3
        if t == 0 and jj > 0: a(f"s_add_u32 s44, s44, {8*6144}")
        EP.append(LW([vr(vQ+4*i,4)]))
        a(f"buffer_store_dwordx4 {vr(vQ+4*i,4)}, v{vT[(16 if jj % 2 else 9)+t]}, s[28:31], s44 offen {cfg.stflag}")
    if cfg.stamps:
        a("s_waitcnt vmcnt(0)")
        a("s_memrealtime s[50:51]")
        a("s_mov_b32 s52, s14"); a("s_mov_b32 s53, s15"); a("s_mov_b32 s54, 0x1000000"); a("s_mov_b32 s55, 0x20000")
        a("s_lshl_b32 s45, s2, 3"); a("s_add_u32 s45, s45, s32"); a("s_lshl_b32 s45, s45, 4")
        a("s_waitcnt lgkmcnt(0)")
        a("v_mov_b32 v20, s56"); a("v_mov_b32 v21, s50"); a("v_mov_b32 v22, s40"); a("s_getreg_b32 s46, hwreg(HW_REG_XCC_ID)"); a("v_mov_b32 v23, s46")
        a("v_mov_b32 v24, 0")
        a("buffer_store_dwordx4 v[20:23], v24, s[52:55], s45 offen")
    a("L_END:"); a("s_endpgm")

    LD = [I("L_LOADER:")]
    a = lambda t, c="": LD.append(I(t, c))
    a("s_sub_u32 s32, s32, 4", "lw")
    a("s_and_b32 s45, s32, 1"); a("s_lshl_b32 s45, s45, 2", "4*(lw&1)"); a("s_lshl_b32 s46, s32, 3", "8*lw")
    vq, vk, vv = [20, 21, 22], [23, 24, 25], [26, 27, 28]
    for t in range(3):
        p, r, sl, x, y = 1, 2, 3, 4, 5
        a(f"v_add_u32 v{p}, {64*t}, v{vLane}"); a(f"v_mul_u32_u24 v{r}, 2731, v{p}"); a(f"v_lshrrev_b32 v{r}, 16, v{r}")
        a(f"v_mul_u32_u24 v{sl}, 24, v{r}"); a(f"v_sub_u32 v{sl}, v{p}, v{sl}")
        a(f"v_lshrrev_b32 v{x}, 1, v{r}")
        a(f"v_and_b32 v{y}, 1, v{x}"); a(f"v_lshlrev_b32 v{y}, 2, v{y}"); a(f"v_xor_b32 v{y}, v{sl}, v{y}", "V slot")
        a(f"v_xor_b32 v{x}, s45, v{x}"); a(f"v_xor_b32 v{x}, v{sl}, v{x}", "K/Q slot")
        a(f"v_add_u32 v{r}, s46, v{r}")
        a(f"v_mul_u32_u24 v{p}, 3072, v{r}")
        if t: a(f"v_subrev_u32 v{p}, {1024*t}, v{p}")
        a(f"v_lshl_add_u32 v{vk[t]}, v{x}, 4, v{p}"); a(f"v_lshl_add_u32 v{vv[t]}, v{y}, 4, v{p}")
        a(f"v_mul_u32_u24 v{p}, 6144, v{r}")
        if t: a(f"v_subrev_u32 v{p}, {1024*t}, v{p}")
        a(f"v_lshl_add_u32 v{vq[t]}, v{x}, 4, v{p}")
    a("s_mul_i32 s45, s35, 3072"); a("s_mul_i32 s46, s33, 384"); a("s_add_u32 s45, s45, s46", "K offset"); a("s_mov_b32 s46, s45", "V offset")
    a("s_mul_i32 s49, s32, 3072", "lw lds offset"); a("s_mov_b32 s50, 0x7fff0000")
    a("s_mov_b32 s47, s39", "K tiles remaining"); a("s_mov_b32 s48, s39", "V tiles remaining")
    a("s_waitcnt lgkmcnt(0)")
    for base, lo, mul in ((16, 6, 3072), (20, 8, 3072), (24, 4, 6144)):
        a(f"s_mov_b32 s{base}, s{lo}"); a(f"s_mov_b32 s{base+1}, s{lo+1}"); a(f"s_mul_i32 s{base+2}, s38, {mul}"); a(f"s_mov_b32 s{base+3}, 0x20000")
    def issue(which, m0expr):
        o = []
        off, rem, srd, vv_ = (45, 47, 16, vk) if which == "K" else (46, 48, 20, vv)
        o += m0expr
        o += [I(f"s_cmp_gt_i32 s{rem}, 0"), I(f"s_cselect_b32 s51, s{off}, s50")]
        for t in range(3):
            o.append(I(f"buffer_load_dwordx4 v{vv_[t]}, s[{srd}:{srd+3}], s51 offen offset:{1024*t} lds"))
        o += [I(f"s_add_u32 s{off}, s{off}, {32*3072}"), I(f"s_sub_i32 s{rem}, s{rem}, 1")]
        return o
    LD += issue("K", [I(f"s_add_u32 m0, s49, {3*STG}")])
    for u in range(4):
        a(f"s_add_u32 m0, s49, {QBASE + u*12288}")
        a(f"s_add_u32 s51, s44, {(u >> 1)*32*6144 + (u & 1)*384}")
        for t in range(3): a(f"buffer_load_dwordx4 v{vq[t]}, s[24:27], s51 offen offset:{1024*t} lds")
    for st in range(3):
        LD += issue("K", [I(f"s_add_u32 m0, s49, {st*STG}")])
        LD += issue("V", [I(f"s_add_u32 m0, s49, {st*STG + VOFF}")])
    a(f"s_add_u32 s52, s49, {3*STG}", "next slot"); a(f"s_add_u32 s53, s49, {4*STG}")
    a("s_sub_u32 s43, s39, 1")
    a("s_waitcnt vmcnt(18)"); a("s_barrier"); a("s_waitcnt vmcnt(12)"); a("s_barrier")
    a("s_cmp_eq_u32 s43, 0"); a("s_cbranch_scc1 L_END2")
    a("L_LDLOOP:")
    a("s_waitcnt vmcnt(6)"); a("s_barrier")
    LD += issue("K", [I("s_mov_b32 m0, s52")])
    LD += issue("V", [I(f"s_add_u32 m0, s52, {VOFF}")])
    a(f"s_add_u32 s52, s52, {STG}"); a("s_cmp_eq_u32 s52, s53"); a("s_cselect_b32 s52, s49, s52")
    a("s_sub_u32 s43, s43, 1"); a("s_cmp_lg_u32 s43, 0"); a("s_cbranch_scc1 L_LDLOOP")
    a("L_END2:"); a("s_endpgm")

    R = []
    for tag in ("L0", "L1", "T0", "T1"): R += rare1(tag) + rare2(tag)

    def lin(*bl):
        o = []
        for b in bl: o += b
        return o
    paths = [lin(E, P0, P1, A0, B0, A1, B1, A0, B0, A1, T1, F1, EP), lin(E, P0, P1, A0, T0, F0, EP), lin(E, P0, ONE, F1, EP),
             lin(E, P0, P1, A0, B0, A1, B1, A0, T0, F0, EP), lin(E, LD)]
    resolve_lgkm(paths)
    for p in paths[:4]:
        ver = [0] * 8; use = [0] * 8
        cnt = [0, 0]
        for ins in p:
            if ins.kind == "valu" and ins.mn.startswith("v_cvt_pk") and vP <= int(ins.ops[0][1:]) < vP + 8:
                k = int(ins.ops[0][1:]) - vP
                assert cnt[k // 4] == 6 * ver[k], ("P overwritten early", ins.text)
                ver[k] += 1
            if ins.kind == "mfma" and ("v", vP) in ins.B or ins.kind == "mfma" and ("v", vP + 4) in ins.B:
                h = 0 if ("v", vP) in ins.B else 1
                for k in range(4 * h, 4 * h + 4): assert ver[k] == cnt[h] // 6 + 1, ("P not ready", ins.text)
                cnt[h] += 1
    errs = []
    for i, p in enumerate(paths): errs += check_hazards(p, f"path{i}")
    def splice(p):
        o = []
        for ins in p:
            o.append(ins)
            if ins.kind == "branch" and "RARE" in ins.text:
                tg = ins.text.split()[-1]; k, tag = tg.split("_")
                o += (rare1(tag) if k == "RARE1" else rare2(tag))[1:]
        return o
    for i, p in enumerate(paths[:4]): errs += check_hazards(splice(p), f"rare{i}")
    for e in dict.fromkeys(errs): print("HAZARD", e)
    allc = lin(E, P0, P1, LOOP, TAIL1, TAIL0, EP, ONE, LD, R)
    body = "\n".join(str(i) for i in allc) + "\n"
    return wrap(body, 8 * NJ, 512, QBASE + 4 * 12288, vgpr=256, sgpr=100), errs

if __name__ == "__main__":
    cfg = Cfg()
    out = sys.argv[1]
    for kv in sys.argv[2:]:
        k, v = kv.split("="); setattr(cfg, k, type(getattr(cfg, k))(eval(v)) if not isinstance(getattr(cfg, k), str) else v)
    txt, errs = gen(cfg)
    open(out, "w").write(txt)
    print("wrote", out, "hazards:", len(errs))
```

```python
import sys, math, struct
from asmlib import *
from mk_common import wrap

CU = [0, 506, 648, 1109, 1416, 1494, 1644, 1941, 2399]
def f32bits(x): return struct.unpack("<I", struct.pack("<f", x))[0]

class Cfg:
    LA = 6
    stamps = False
    dbgst = False
    stflag = ""
    thr = 8.0
    prio = 0

def make_jobs():
    jobs = []
    for i in range(8):
        s, L = CU[i], CU[i+1] - CU[i]
        nt = (L + 31) // 32
        for b in range((L + 63) // 64):
            jobs.append((min(2*b+2, nt), s, L, b))
    jobs.sort(key=lambda j: -j[0])
    return jobs

vO = 160; vQ = 112; vS = [80, 96]; vRing = 48; vP = 40
vK = [1, 2, 3, 4]; vVe, vVo = 5, 6; vM, vL, vF, vMx, vT0, vT1, vNeg = 7, 8, 9, 10, 11, 12, 13
vLane, vRow, vH, vX = 14, 15, 16, 17
vT = list(range(18, 40))
STG = 24576; VOFF = 12288; QBASE = 98304; TOG = 0xC000
sC = 41
sMask = 64

def gen(cfg):
    jobs = make_jobs(); NJ = len(jobs)
    LA = cfg.LA
    def ring(n): return vRing + 4 * (n % 8)
    def kread(n, s, imm): return [I(f"ds_read_b128 {vr(ring(n),4)}, v{vK[s%4]} offset:{imm + (s//4)*128}")]
    def vread(n, idx, imm):
        s, dt = idx // 6, idx % 6
        a = vVe if dt % 2 == 0 else vVo
        return [I(f"ds_read_b64_tr_b16 {vr(ring(n)+2*u,2)}, v{a} offset:{imm + VOFF + (16*s+8*u)*384 + 64*dt}") for u in range(2)]
    def qk(n, s, S): return I(f"v_mfma_f32_32x32x16_bf16 {vr(S,16)}, {vr(ring(n),4)}, {vr(vQ+4*s,4)}, " + ("0" if s == 0 else vr(S,16)))
    def pv(n, idx):
        s, dt = idx // 6, idx % 6
        return I(f"v_mfma_f32_32x32x16_bf16 {vr(vO+16*dt,16)}, {vr(ring(n),4)}, {vr(vP+4*s,4)}, {vr(vO+16*dt,16)}")
    def cost(i): return 8 if i.trans else 4
    def Elist(S):
        F = [I(f"v_fma_f32 v{S+r}, v{S+r}, s{sC}, -v{vM}") for r in range(16)]
        X = [I(f"v_exp_f32 v{S+r}, v{S+r}") for r in range(16)]
        A = [I(f"v_add_f32 v{vL}, v{vL}, v{S+r}") for r in range(16)]
        C = [I(f"v_cvt_pk_bf16_f32 v{vP+k}, v{S+2*k}, v{S+2*k+1}") for k in range(8)]
        out = [F[0], F[1]]
        for r in range(16):
            out.append(X[r])
            if r + 2 < 16: out.append(F[r+2])
            if r >= 1: out.append(A[r-1])
            if r >= 2 and r % 2 == 0: out.append(C[(r-2)//2])
        out += [I("s_nop 0"), A[15], C[7]]
        return out
    def Mlist(S, tag):
        o = [I(f"v_max3_f32 v{vMx}, v{S}, v{S+1}, v{S+2}"), I(f"v_max3_f32 v{vT0}, v{S+3}, v{S+4}, v{S+5}")]
        o += [I(f"v_max3_f32 v{vMx}, v{vMx}, v{S+6}, v{S+7}"), I(f"v_max3_f32 v{vT0}, v{vT0}, v{S+8}, v{S+9}")]
        o += [I(f"v_max3_f32 v{vMx}, v{vMx}, v{S+10}, v{S+11}"), I(f"v_max3_f32 v{vT0}, v{vT0}, v{S+12}, v{S+13}")]
        o += [I(f"v_max3_f32 v{vMx}, v{vMx}, v{S+14}, v{S+15}"), I(f"v_max_f32 v{vMx}, v{vMx}, v{vT0}")]
        if tag is not None:
            o += [I(f"v_fma_f32 v{vT0}, v{vMx}, s{sC}, -v{vM}"), I(f"v_cmp_lt_f32 vcc, 0x{f32bits(cfg.thr):08x}, v{vT0}"),
                  I(f"s_cbranch_vccnz RARE1_{tag}"), I(f"RET1_{tag}:")]
        return o
    def masklist(S):
        return [I(f"v_cndmask_b32 v{S+r}, v{S+r}, v{vNeg}, {sr(sMask+2*r,2)}") for r in range(16)]
    def rare1(tag):
        return [I(f"RARE1_{tag}:"), I(f"v_mov_b32 v{vT1}, v{vMx}"), I("s_nop 1"), I(f"v_permlane32_swap_b32 v{vMx}, v{vT1}"),
                I(f"v_max_f32 v{vMx}, v{vMx}, v{vT1}"), I(f"v_mul_f32 v{vMx}, s{sC}, v{vMx}"), I(f"v_max_f32 v{vMx}, v{vMx}, v{vM}"),
                I(f"v_sub_f32 v{vF}, v{vM}, v{vMx}"), I(f"v_exp_f32 v{vF}, v{vF}"), I(f"v_mov_b32 v{vM}, v{vMx}"),
                I(f"v_mul_f32 v{vL}, v{vL}, v{vF}"), I(f"s_branch RET1_{tag}")]
    def rare2(tag):
        return [I(f"RARE2_{tag}:"), I("s_nop 15")] + [I(f"v_mul_f32 v{vO+i}, v{vO+i}, v{vF}") for i in range(96)] + [I("s_nop 1"), I(f"s_branch RET2_{tag}")]

    def spread(items, g0, g1, gaps):
        tot = sum(cost(i) if i.kind != "label" else 0 for i in items); n = g1 - g0 + 1
        acc = 0
        for it in items:
            c = cost(it) if it.kind != "label" else 0
            g = g0 + min(n - 1, int((acc + c / 2) * n / tot)) if it.kind != "label" else lastg
            gaps[g].append(it); lastg = g; acc += c

    def phase(mf, reads, gaps, n0):
        out = []
        for g in range(12):
            if g % 2 == 0:
                out.append(LW([vr(ring(n0+g),4), vr(ring(n0+g+1),4)]))
            out.append(mf[g])
            out += reads[g]
            out += gaps[g]
        return out

    def Esplit(S, c1):
        E = Elist(S); acc = 0; k = 0
        while acc < c1: acc += cost(E[k]); k += 1
        return E[:k], E[k:]
    C1 = 104
    def Ehalf(S):
        E = Elist(S)
        k = [i for i, x in enumerate(E) if x.text.startswith(f"v_cvt_pk_bf16_f32 v{vP+3},")][0] + 1
        return E[:k], E[k:]
    def Esplit3(S):
        p1, rest = Esplit(S, C1)
        tot = sum(cost(i) for i in rest); acc = 0; k = 0
        while acc < tot * 12 / 14: acc += cost(rest[k]); k += 1
        return p1, rest[:k], rest[k:]

    def phaseA(par):
        cur, nxt = vS[par], vS[1-par]
        imm = STG * par
        mf = [qk(s, s, nxt) for s in range(12)]
        reads = [[] for _ in range(12)]
        for g in range(12):
            n = g + LA
            reads[g] = kread(n, n, imm) if n < 12 else vread(n, n - 12, imm)
        gaps = [[] for _ in range(12)]
        _, pa, _ = Esplit3(cur)
        spread(pa, 0, 11, gaps)
        if par == 1:
            for i in range(4): gaps[7 + i].append(I(f"v_xor_b32 v{vK[i]}, 0x{TOG:x}, v{vK[i]}"))
        gaps[10].append(I("s_sub_u32 s43, s43, 1"))
        return phase(mf, reads, gaps, 0)
    def phaseB(par, tail):
        cur, nxt = vS[par], vS[1-par]
        imm = STG * par
        tag = f"{'T' if tail else 'L'}{par}"
        mf = [pv(12 + i, i) for i in range(12)]
        reads = [[] for _ in range(12)]
        gaps = [[] for _ in range(12)]
        nimm = STG * (1 - par)
        for g in range(12):
            n = 12 + g + LA
            if n < 24: reads[g] = vread(n, n - 12, imm)
            else: reads[g] = vread(n, n - 24, nimm) if tail else kread(n, n - 24, nimm)
        first = 12 - LA
        pre = []
        if par == 1:
            pre = [I(f"v_xor_b32 v{vVe}, 0x{TOG:x}, v{vVe}"), I(f"v_xor_b32 v{vVo}, 0x{TOG:x}, v{vVo}")]
        reads[first] = pre + [I("s_barrier")] + reads[first]
        _, _, pb = Esplit3(cur)
        spread(pb, 0, 1, gaps)
        if not tail:
            p1, _, _ = Esplit3(nxt)
            spread(Mlist(nxt, tag), 2, 3, gaps)
            spread(p1, 4, 11, gaps)
        else:
            p1, _ = Ehalf(nxt)
            spread(masklist(nxt) + Mlist(nxt, tag), 2, 5, gaps)
            spread(p1, 6, 11, gaps)
        out = phase(mf, reads, gaps, 12)
        out += [I(f"s_cbranch_vccnz RARE2_{tag}"), I(f"RET2_{tag}:")]
        return out
    def phaseF(par):
        S = vS[1-par]; imm = STG * (1 - par)
        mf = [pv(24 + i, i) for i in range(12)]
        reads = [[] for _ in range(12)]
        for g in range(12):
            n = 24 + g + LA
            if n < 36: reads[g] = vread(n, n - 24, imm)
        gaps = [[] for _ in range(12)]
        _, p2 = Ehalf(S)
        spread(p2, 0, 4, gaps)
        fin = [I(f"v_mov_b32 v{vT1}, v{vL}"), I("s_nop 1"), I(f"v_permlane32_swap_b32 v{vL}, v{vT1}"), I(f"v_add_f32 v{vL}, v{vL}, v{vT1}"),
               I(f"v_rcp_f32 v{vF}, v{vL}")]
        spread(fin, 6, 8, gaps)
        return [I(f"FIN_{par}:"), I("s_nop 1")] + phase(mf, reads, gaps, 24)

    E = []
    a = lambda t, c="": E.append(I(t, c))
    a("s_load_dwordx8 s[4:11], s[0:1], 0")
    a("s_load_dwordx2 s[12:13], s[0:1], 32")
    if cfg.stamps:
        a("s_load_dwordx2 s[14:15], s[0:1], 48")
        a("s_memrealtime s[56:57]")
    if cfg.dbgst:
        a("s_load_dwordx2 s[14:15], s[0:1], 40")
        a("s_memrealtime s[56:57]")
        a("s_memtime s[54:55]")
    a("s_lshr_b32 s34, s2, 3"); a("s_and_b32 s33, s2, 7")
    a(f"s_cmp_ge_u32 s34, {NJ}"); a("s_cbranch_scc1 L_END")
    a("v_lshrrev_b32 v1, 6, v0"); a(f"v_and_b32 v{vLane}, 63, v0")
    a("s_mov_b32 m0, s34")
    a("v_readfirstlane_b32 s32, v1")
    for i, (n, s, L, b) in enumerate(jobs):
        a(f"s_mov_b32 s{58+i}, 0x{(s | (L << 12) | (b << 22)):x}")
    a("s_movrels_b32 s34, s58")
    a("s_and_b32 s35, s34, 0xfff", "seq start"); a("s_bfe_u32 s36, s34, 0xa000c", "L"); a("s_lshr_b32 s37, s34, 22", "b")
    a("s_add_u32 s38, s35, s36", "seq end")
    a("s_add_u32 s39, s36, 31"); a("s_lshr_b32 s39, s39, 5"); a("s_lshl_b32 s42, s37, 1"); a("s_add_u32 s40, s42, 2")
    a("s_min_u32 s39, s39, s40", "N")
    a("s_lshl_b32 s40, s37, 6"); a("s_add_u32 s40, s40, s35", "q0")
    a("s_mul_i32 s44, s40, 6144"); a("s_mul_i32 s40, s33, 768"); a("s_add_u32 s44, s44, s40", "Q/O offset of block, head pair")
    a("s_cmp_ge_u32 s32, 4"); a("s_cbranch_scc1 L_LOADER")

    P0 = []
    a = lambda t, c="": P0.append(I(t, c))
    a("s_lshr_b32 s45, s32, 1", "th"); a("s_and_b32 s46, s32, 1", "hh")
    a("s_add_u32 s40, s42, s45", "tile index"); a("s_lshl_b32 s47, s40, 5"); a("s_cmp_ge_u32 s47, s36"); a("s_cbranch_scc1 L_END")
    a("s_add_u32 s40, s40, 1", "N_w")
    a(f"s_mul_i32 s45, s45, {32*6144}"); a("s_mul_i32 s46, s46, 384"); a("s_add_u32 s44, s44, s45"); a("s_add_u32 s44, s44, s46")
    if cfg.prio: a(f"s_setprio {cfg.prio}")
    a(f"v_and_b32 v{vRow}, 31, v{vLane}"); a(f"v_lshrrev_b32 v{vH}, 5, v{vLane}"); a(f"v_bfe_u32 v{vX}, v{vLane}, 1, 3")
    a(f"v_mul_u32_u24 v{vT[0]}, 384, v{vRow}")
    a(f"v_xor_b32 v{vT[1]}, v{vH}, v{vX}"); a(f"v_lshl_add_u32 v{vT[1]}, v{vT[1]}, 4, v{vT[0]}", "K lane base")
    a(f"s_mul_i32 s45, s32, 12288"); a(f"s_add_u32 s45, s45, {QBASE}", "wave staging base")
    for i in range(4):
        a(f"v_xor_b32 v{vT[2+i]}, {i<<5}, v{vT[1]}")
    for i in range(4):
        a(f"v_add_u32 v{vK[i]}, 0x{TOG:x}, v{vT[2+i]}")
        a(f"v_add_u32 v{vT[2+i]}, s45, v{vT[2+i]}")
    a(f"v_bfe_u32 v{vT[6]}, v{vLane}, 2, 2", "r"); a(f"v_lshl_add_u32 v{vT[7]}, v{vH}, 2, v{vT[6]}", "4h+r")
    a(f"v_mul_u32_u24 v{vT[7]}, 384, v{vT[7]}")
    a(f"v_bfe_u32 v{vT[8]}, v{vLane}, 4, 1"); a(f"v_lshl_add_u32 v{vT[7]}, v{vT[8]}, 5, v{vT[7]}")
    a(f"v_and_b32 v{vT[8]}, 3, v{vLane}"); a(f"v_lshl_add_u32 v{vT[7]}, v{vT[8]}, 3, v{vT[7]}")
    a(f"v_bfe_u32 v{vT[8]}, v{vLane}, 3, 1", "y"); a(f"v_lshlrev_b32 v{vT[8]}, 6, v{vT[8]}")
    a(f"v_add_u32 v{vVe}, v{vT[7]}, v{vT[8]}"); a(f"v_sub_u32 v{vVo}, v{vT[7]}, v{vT[8]}")
    a(f"s_mov_b32 s{sC}, 0x{f32bits(math.log2(math.e) / math.sqrt(192)):08x}")
    a(f"v_mov_b32 v{vNeg}, 0xff800000"); a(f"v_mov_b32 v{vL}, 0")
    for r in range(16):
        g, i = r >> 2, r & 3
        lo = sum(1 << l for l in range(32) if 8*g + i > l); hi = sum(1 << l for l in range(32) if 8*g + 4 + i > l)
        a(f"s_mov_b32 s{sMask+2*r}, 0x{lo:x}"); a(f"s_mov_b32 s{sMask+2*r+1}, 0x{hi:x}")
    for i in range(96): a(f"v_mov_b32 v{vO+i}, 0")
    a("s_sub_u32 s43, s40, 2")
    a("s_waitcnt lgkmcnt(0)")
    a("s_mov_b32 s28, s12"); a("s_mov_b32 s29, s13"); a("s_mul_i32 s30, s38, 6144"); a("s_mov_b32 s31, 0x20000")
    a("s_barrier", "B_init: Q and K0 landed")
    for s in range(12):
        if s < LA: P0 += kread(s + 12, s, STG)
        a(f"ds_read_b128 {vr(vQ+4*s,4)}, v{vT[2+s%4]} offset:{(s//4)*128}")
    if True:
        for s in range(12):
            P0.append(LW([vr(ring(12+s),4), vr(vQ+4*s,4)]))
            P0.append(qk(12 + s, s, vS[0]))
            if s + LA < 12: P0 += kread(12 + s + LA, s + LA, STG)
    for i in range(4): a(f"v_xor_b32 v{vK[i]}, 0x{TOG:x}, v{vK[i]}")
    a("s_cmp_eq_u32 s40, 1")
    a("s_barrier", "stage 0 landed")
    a("s_cbranch_scc1 L_ONE")
    P1 = []
    def m0list():
        o = Mlist(vS[0], None)
        o += [I(f"v_mov_b32 v{vT1}, v{vMx}"), I("s_nop 1"), I(f"v_permlane32_swap_b32 v{vMx}, v{vT1}"),
              I(f"v_max_f32 v{vMx}, v{vMx}, v{vT1}"), I(f"v_mul_f32 v{vM}, s{sC}, v{vMx}")]
        return o
    for s in range(LA): P1 += kread(s, s, 0)
    P1 += [I("s_nop 3")] + m0list() + Esplit3(vS[0])[0]
    ONE = [I("L_ONE:")]
    for i in range(LA): ONE += vread(24 + i, i, 0)
    ONE += masklist(vS[0]) + m0list() + Ehalf(vS[0])[0] + [I("s_branch FIN_1")]

    A0, A1 = phaseA(0), phaseA(1)
    B0, B1 = phaseB(0, False), phaseB(1, False)
    T0, T1 = phaseB(0, True), phaseB(1, True)
    F0, F1 = phaseF(0), phaseF(1)
    LOOP = [I("L_LOOP:")] + A0 + [I("s_cbranch_scc1 TAIL_0")] + B0 + A1 + [I("s_cbranch_scc1 TAIL_1")] + B1 + [I("s_branch L_LOOP")]
    TAIL1 = [I("TAIL_1:")] + T1 + F1 + [I("s_branch L_EPI")]
    TAIL0 = [I("TAIL_0:")] + T0 + F0

    EP = [I("L_EPI:")]
    a = lambda t, c="": EP.append(I(t, c))
    a("s_cmp_eq_u32 s40, s39"); a("s_cbranch_scc1 L_NOXB"); a("s_barrier"); a("L_NOXB:")
    a(f"v_mul_u32_u24 v{vT[0]}, 384, v{vRow}"); a(f"v_lshl_add_u32 v{vT[0]}, v{vX}, 4, v{vT[0]}"); a(f"v_lshl_add_u32 v{vT[0]}, v{vH}, 3, v{vT[0]}")
    a(f"v_add_u32 v{vT[0]}, s45, v{vT[0]}")
    for b in range(1, 8): a(f"v_xor_b32 v{vT[b]}, {b<<4}, v{vT[0]}")
    a(f"v_lshlrev_b32 v{vT[8]}, 4, v{vLane}"); a(f"v_add_u32 v{vT[8]}, s45, v{vT[8]}")
    for c in range(24):
        dt, g = c // 4, c % 4; o = vO + 16*dt + 4*g
        a(f"v_pk_mul_f32 {vr(o,2)}, {vr(o,2)}, {vr(vF-1,2)} op_sel:[0,1] op_sel_hi:[1,1]")
        a(f"v_pk_mul_f32 {vr(o+2,2)}, {vr(o+2,2)}, {vr(vF-1,2)} op_sel:[0,1] op_sel_hi:[1,1]")
        a(f"v_cvt_pk_bf16_f32 v{o}, v{o}, v{o+1}"); a(f"v_cvt_pk_bf16_f32 v{o+1}, v{o+2}, v{o+3}")
        a(f"ds_write_b64 v{vT[c%8]}, {vr(o,2)} offset:{(c//8)*128}")
    for t in range(3):
        p, r, sl, x = vT[12], vT[13], vT[14], vT[15]
        a(f"v_add_u32 v{p}, {64*t}, v{vLane}"); a(f"v_mul_u32_u24 v{r}, 2731, v{p}"); a(f"v_lshrrev_b32 v{r}, 16, v{r}")
        a(f"v_mul_u32_u24 v{sl}, 24, v{r}"); a(f"v_sub_u32 v{sl}, v{p}, v{sl}")
        a(f"v_lshrrev_b32 v{x}, 1, v{r}"); a(f"v_xor_b32 v{sl}, v{sl}, v{x}")
        a(f"v_mul_u32_u24 v{r}, 6144, v{r}"); a(f"v_lshl_add_u32 v{vT[9+t]}, v{sl}, 4, v{r}")
        a(f"v_xor_b32 v{vT[16+t]}, 64, v{vT[9+t]}")
    a("s_waitcnt lgkmcnt(0)")
    for i in range(12): a(f"ds_read_b128 {vr(vQ+4*i,4)}, v{vT[8]} offset:{1024*i}")
    for i in range(12):
        jj, t = i // 3, i % 3
        if t == 0 and jj > 0: a(f"s_add_u32 s44, s44, {8*6144}")
        EP.append(LW([vr(vQ+4*i,4)]))
        a(f"buffer_store_dwordx4 {vr(vQ+4*i,4)}, v{vT[(16 if jj % 2 else 9)+t]}, s[28:31], s44 offen {cfg.stflag}")
    if cfg.stamps:
        a("s_waitcnt vmcnt(0)")
        a("s_memrealtime s[50:51]")
        a("s_mov_b32 s52, s14"); a("s_mov_b32 s53, s15"); a("s_mov_b32 s54, 0x1000000"); a("s_mov_b32 s55, 0x20000")
        a("s_lshl_b32 s45, s2, 3"); a("s_add_u32 s45, s45, s32"); a("s_lshl_b32 s45, s45, 4")
        a("s_waitcnt lgkmcnt(0)")
        a("v_mov_b32 v20, s56"); a("v_mov_b32 v21, s50"); a("v_mov_b32 v22, s40"); a("s_getreg_b32 s46, hwreg(HW_REG_XCC_ID)"); a("v_mov_b32 v23, s46")
        a("v_mov_b32 v24, 0")
        a("buffer_store_dwordx4 v[20:23], v24, s[52:55], s45 offen")
    if cfg.dbgst:
        a("s_waitcnt vmcnt(0)")
        a("s_memrealtime s[50:51]"); a("s_memtime s[48:49]")
        a("s_mov_b32 s60, s14"); a("s_mov_b32 s61, s15"); a("s_mov_b32 s62, 256"); a("s_mov_b32 s63, 0x20000")
        a("s_waitcnt lgkmcnt(0)")
        a("s_not_b32 s45, s56"); a("s_sub_u32 s46, s50, s56"); a("s_sub_u32 s47, s48, s54")
        a("v_mov_b32 v20, s45"); a("v_mov_b32 v21, s50"); a("v_mov_b32 v22, s46"); a("v_mov_b32 v23, s47"); a("v_mov_b32 v25, s56")
        a("v_mov_b32 v24, 0")
        a("s_mov_b64 exec, 1")
        a("buffer_atomic_umax v20, v24, s[60:63], 0 offen")
        a("buffer_atomic_umax v21, v24, s[60:63], 0 offen offset:4")
        a("buffer_atomic_umax v22, v24, s[60:63], 0 offen offset:8")
        a("buffer_atomic_umax v23, v24, s[60:63], 0 offen offset:12")
        a("buffer_atomic_umax v25, v24, s[60:63], 0 offen offset:16")
    a("L_END:"); a("s_endpgm")

    LD = [I("L_LOADER:")]
    a = lambda t, c="": LD.append(I(t, c))
    a("s_sub_u32 s32, s32, 4", "lw")
    a("s_and_b32 s45, s32, 1"); a("s_lshl_b32 s45, s45, 2", "4*(lw&1)"); a("s_lshl_b32 s46, s32, 3", "8*lw")
    vq, vk, vv = [20, 21, 22], [23, 24, 25], [26, 27, 28]
    for t in range(3):
        p, r, sl, x, y = 1, 2, 3, 4, 5
        a(f"v_add_u32 v{p}, {64*t}, v{vLane}"); a(f"v_mul_u32_u24 v{r}, 2731, v{p}"); a(f"v_lshrrev_b32 v{r}, 16, v{r}")
        a(f"v_mul_u32_u24 v{sl}, 24, v{r}"); a(f"v_sub_u32 v{sl}, v{p}, v{sl}")
        a(f"v_lshrrev_b32 v{x}, 1, v{r}")
        a(f"v_and_b32 v{y}, 1, v{x}"); a(f"v_lshlrev_b32 v{y}, 2, v{y}"); a(f"v_xor_b32 v{y}, v{sl}, v{y}", "V slot")
        a(f"v_xor_b32 v{x}, s45, v{x}"); a(f"v_xor_b32 v{x}, v{sl}, v{x}", "K/Q slot")
        a(f"v_add_u32 v{r}, s46, v{r}")
        a(f"v_mul_u32_u24 v{p}, 3072, v{r}")
        if t: a(f"v_subrev_u32 v{p}, {1024*t}, v{p}")
        a(f"v_lshl_add_u32 v{vk[t]}, v{x}, 4, v{p}"); a(f"v_lshl_add_u32 v{vv[t]}, v{y}, 4, v{p}")
        a(f"v_mul_u32_u24 v{p}, 6144, v{r}")
        if t: a(f"v_subrev_u32 v{p}, {1024*t}, v{p}")
        a(f"v_lshl_add_u32 v{vq[t]}, v{x}, 4, v{p}")
    a("s_mul_i32 s45, s35, 3072"); a("s_mul_i32 s46, s33, 384"); a("s_add_u32 s45, s45, s46", "K offset"); a("s_mov_b32 s46, s45", "V offset")
    a("s_mul_i32 s49, s32, 3072", "lw lds offset"); a("s_mov_b32 s50, 0x7fff0000")
    a("s_mov_b32 s47, s39", "K tiles remaining"); a("s_mov_b32 s48, s39", "V tiles remaining")
    a("s_waitcnt lgkmcnt(0)")
    for base, lo, mul in ((16, 6, 3072), (20, 8, 3072), (24, 4, 6144)):
        a(f"s_mov_b32 s{base}, s{lo}"); a(f"s_mov_b32 s{base+1}, s{lo+1}"); a(f"s_mul_i32 s{base+2}, s38, {mul}"); a(f"s_mov_b32 s{base+3}, 0x20000")
    def issue(which, m0expr):
        o = []
        off, rem, srd, vv_ = (45, 47, 16, vk) if which == "K" else (46, 48, 20, vv)
        o += m0expr
        o += [I(f"s_cmp_gt_i32 s{rem}, 0"), I(f"s_cselect_b32 s51, s{off}, s50")]
        for t in range(3):
            o.append(I(f"buffer_load_dwordx4 v{vv_[t]}, s[{srd}:{srd+3}], s51 offen offset:{1024*t} lds"))
        o += [I(f"s_add_u32 s{off}, s{off}, {32*3072}"), I(f"s_sub_i32 s{rem}, s{rem}, 1")]
        return o
    LD += issue("K", [I(f"s_add_u32 m0, s49, {3*STG}")])
    for u in range(4):
        a(f"s_add_u32 m0, s49, {QBASE + u*12288}")
        a(f"s_add_u32 s51, s44, {(u >> 1)*32*6144 + (u & 1)*384}")
        for t in range(3): a(f"buffer_load_dwordx4 v{vq[t]}, s[24:27], s51 offen offset:{1024*t} lds")
    for st in range(3):
        LD += issue("K", [I(f"s_add_u32 m0, s49, {st*STG}")])
        LD += issue("V", [I(f"s_add_u32 m0, s49, {st*STG + VOFF}")])
    a(f"s_add_u32 s52, s49, {3*STG}", "next slot"); a(f"s_add_u32 s53, s49, {4*STG}")
    a("s_sub_u32 s43, s39, 1")
    a("s_waitcnt vmcnt(18)"); a("s_barrier"); a("s_waitcnt vmcnt(12)"); a("s_barrier")
    a("s_cmp_eq_u32 s43, 0"); a("s_cbranch_scc1 L_END2")
    a("L_LDLOOP:")
    a("s_waitcnt vmcnt(6)"); a("s_barrier")
    LD += issue("K", [I("s_mov_b32 m0, s52")])
    LD += issue("V", [I(f"s_add_u32 m0, s52, {VOFF}")])
    a(f"s_add_u32 s52, s52, {STG}"); a("s_cmp_eq_u32 s52, s53"); a("s_cselect_b32 s52, s49, s52")
    a("s_sub_u32 s43, s43, 1"); a("s_cmp_lg_u32 s43, 0"); a("s_cbranch_scc1 L_LDLOOP")
    a("L_END2:"); a("s_endpgm")

    R = []
    for tag in ("L0", "L1", "T0", "T1"): R += rare1(tag) + rare2(tag)

    def lin(*bl):
        o = []
        for b in bl: o += b
        return o
    paths = [lin(E, P0, P1, A0, B0, A1, B1, A0, B0, A1, T1, F1, EP), lin(E, P0, P1, A0, T0, F0, EP), lin(E, P0, ONE, F1, EP),
             lin(E, P0, P1, A0, B0, A1, B1, A0, T0, F0, EP), lin(E, LD)]
    resolve_lgkm(paths)
    for p in paths[:4]:
        ver = [0] * 8; use = [0] * 8
        cnt = [0, 0]
        for ins in p:
            if ins.kind == "valu" and ins.mn.startswith("v_cvt_pk") and vP <= int(ins.ops[0][1:]) < vP + 8:
                k = int(ins.ops[0][1:]) - vP
                assert cnt[k // 4] == 6 * ver[k], ("P overwritten early", ins.text)
                ver[k] += 1
            if ins.kind == "mfma" and ("v", vP) in ins.B or ins.kind == "mfma" and ("v", vP + 4) in ins.B:
                h = 0 if ("v", vP) in ins.B else 1
                for k in range(4 * h, 4 * h + 4): assert ver[k] == cnt[h] // 6 + 1, ("P not ready", ins.text)
                cnt[h] += 1
    errs = []
    for i, p in enumerate(paths): errs += check_hazards(p, f"path{i}")
    def splice(p):
        o = []
        for ins in p:
            o.append(ins)
            if ins.kind == "branch" and "RARE" in ins.text:
                tg = ins.text.split()[-1]; k, tag = tg.split("_")
                o += (rare1(tag) if k == "RARE1" else rare2(tag))[1:]
        return o
    for i, p in enumerate(paths[:4]): errs += check_hazards(splice(p), f"rare{i}")
    for e in dict.fromkeys(errs): print("HAZARD", e)
    allc = lin(E, P0, P1, LOOP, TAIL1, TAIL0, EP, ONE, LD, R)
    body = "\n".join(str(i) for i in allc) + "\n"
    return wrap(body, 8 * NJ, 512, QBASE + 4 * 12288, vgpr=256, sgpr=100), errs

if __name__ == "__main__":
    cfg = Cfg()
    out = sys.argv[1]
    for kv in sys.argv[2:]:
        k, v = kv.split("="); setattr(cfg, k, type(getattr(cfg, k))(eval(v)) if not isinstance(getattr(cfg, k), str) else v)
    txt, errs = gen(cfg)
    open(out, "w").write(txt)
    print("wrote", out, "hazards:", len(errs))
```

```python
import sys, math, struct
from asmlib import *
from mk_common import wrap

CU = [0, 506, 648, 1109, 1416, 1494, 1644, 1941, 2399]
def f32bits(x): return struct.unpack("<I", struct.pack("<f", x))[0]

class Cfg:
    LA = 6
    stamps = False
    dbgst = False
    dbgw = (0, 7, 128, 335)
    stflag = ""
    thr = 8.0
    prio = 0

def make_jobs():
    jobs = []
    for i in range(8):
        s, L = CU[i], CU[i+1] - CU[i]
        nt = (L + 31) // 32
        for b in range((L + 63) // 64):
            jobs.append((min(2*b+2, nt), s, L, b))
    jobs.sort(key=lambda j: -j[0])
    return jobs

vO = 160; vQ = 112; vS = [80, 96]; vRing = 48; vP = 40
vK = [1, 2, 3, 4]; vVe, vVo = 5, 6; vM, vL, vF, vMx, vT0, vT1, vNeg = 7, 8, 9, 10, 11, 12, 13
vLane, vRow, vH, vX = 14, 15, 16, 17
vT = list(range(18, 40))
STG = 24576; VOFF = 12288; QBASE = 98304; TOG = 0xC000
sC = 41
sMask = 64

def gen(cfg):
    jobs = make_jobs(); NJ = len(jobs)
    LA = cfg.LA
    def ring(n): return vRing + 4 * (n % 8)
    def kread(n, s, imm): return [I(f"ds_read_b128 {vr(ring(n),4)}, v{vK[s%4]} offset:{imm + (s//4)*128}")]
    def vread(n, idx, imm):
        s, dt = idx // 6, idx % 6
        a = vVe if dt % 2 == 0 else vVo
        return [I(f"ds_read_b64_tr_b16 {vr(ring(n)+2*u,2)}, v{a} offset:{imm + VOFF + (16*s+8*u)*384 + 64*dt}") for u in range(2)]
    def qk(n, s, S): return I(f"v_mfma_f32_32x32x16_bf16 {vr(S,16)}, {vr(ring(n),4)}, {vr(vQ+4*s,4)}, " + ("0" if s == 0 else vr(S,16)))
    def pv(n, idx):
        s, dt = idx // 6, idx % 6
        return I(f"v_mfma_f32_32x32x16_bf16 {vr(vO+16*dt,16)}, {vr(ring(n),4)}, {vr(vP+4*s,4)}, {vr(vO+16*dt,16)}")
    def cost(i): return 8 if i.trans else 4
    def Elist(S):
        F = [I(f"v_fma_f32 v{S+r}, v{S+r}, s{sC}, -v{vM}") for r in range(16)]
        X = [I(f"v_exp_f32 v{S+r}, v{S+r}") for r in range(16)]
        A = [I(f"v_add_f32 v{vL}, v{vL}, v{S+r}") for r in range(16)]
        C = [I(f"v_cvt_pk_bf16_f32 v{vP+k}, v{S+2*k}, v{S+2*k+1}") for k in range(8)]
        out = [F[0], F[1]]
        for r in range(16):
            out.append(X[r])
            if r + 2 < 16: out.append(F[r+2])
            if r >= 1: out.append(A[r-1])
            if r >= 2 and r % 2 == 0: out.append(C[(r-2)//2])
        out += [I("s_nop 0"), A[15], C[7]]
        return out
    def Mlist(S, tag):
        o = [I(f"v_max3_f32 v{vMx}, v{S}, v{S+1}, v{S+2}"), I(f"v_max3_f32 v{vT0}, v{S+3}, v{S+4}, v{S+5}")]
        o += [I(f"v_max3_f32 v{vMx}, v{vMx}, v{S+6}, v{S+7}"), I(f"v_max3_f32 v{vT0}, v{vT0}, v{S+8}, v{S+9}")]
        o += [I(f"v_max3_f32 v{vMx}, v{vMx}, v{S+10}, v{S+11}"), I(f"v_max3_f32 v{vT0}, v{vT0}, v{S+12}, v{S+13}")]
        o += [I(f"v_max3_f32 v{vMx}, v{vMx}, v{S+14}, v{S+15}"), I(f"v_max_f32 v{vMx}, v{vMx}, v{vT0}")]
        if tag is not None:
            o += [I(f"v_fma_f32 v{vT0}, v{vMx}, s{sC}, -v{vM}"), I(f"v_cmp_lt_f32 vcc, 0x{f32bits(cfg.thr):08x}, v{vT0}"),
                  I(f"s_cbranch_vccnz RARE1_{tag}"), I(f"RET1_{tag}:")]
        return o
    def masklist(S):
        return [I(f"v_cndmask_b32 v{S+r}, v{S+r}, v{vNeg}, {sr(sMask+2*r,2)}") for r in range(16)]
    def rare1(tag):
        return [I(f"RARE1_{tag}:"), I(f"v_mov_b32 v{vT1}, v{vMx}"), I("s_nop 1"), I(f"v_permlane32_swap_b32 v{vMx}, v{vT1}"),
                I(f"v_max_f32 v{vMx}, v{vMx}, v{vT1}"), I(f"v_mul_f32 v{vMx}, s{sC}, v{vMx}"), I(f"v_max_f32 v{vMx}, v{vMx}, v{vM}"),
                I(f"v_sub_f32 v{vF}, v{vM}, v{vMx}"), I(f"v_exp_f32 v{vF}, v{vF}"), I(f"v_mov_b32 v{vM}, v{vMx}"),
                I(f"v_mul_f32 v{vL}, v{vL}, v{vF}"), I(f"s_branch RET1_{tag}")]
    def rare2(tag):
        return [I(f"RARE2_{tag}:"), I("s_nop 15")] + [I(f"v_mul_f32 v{vO+i}, v{vO+i}, v{vF}") for i in range(96)] + [I("s_nop 1"), I(f"s_branch RET2_{tag}")]

    def spread(items, g0, g1, gaps):
        tot = sum(cost(i) if i.kind != "label" else 0 for i in items); n = g1 - g0 + 1
        acc = 0
        for it in items:
            c = cost(it) if it.kind != "label" else 0
            g = g0 + min(n - 1, int((acc + c / 2) * n / tot)) if it.kind != "label" else lastg
            gaps[g].append(it); lastg = g; acc += c

    def phase(mf, reads, gaps, n0):
        out = []
        for g in range(12):
            if g % 2 == 0:
                out.append(LW([vr(ring(n0+g),4), vr(ring(n0+g+1),4)]))
            out.append(mf[g])
            out += reads[g]
            out += gaps[g]
        return out

    def Esplit(S, c1):
        E = Elist(S); acc = 0; k = 0
        while acc < c1: acc += cost(E[k]); k += 1
        return E[:k], E[k:]
    C1 = 104
    def Ehalf(S):
        E = Elist(S)
        k = [i for i, x in enumerate(E) if x.text.startswith(f"v_cvt_pk_bf16_f32 v{vP+3},")][0] + 1
        return E[:k], E[k:]
    def Esplit3(S):
        p1, rest = Esplit(S, C1)
        tot = sum(cost(i) for i in rest); acc = 0; k = 0
        while acc < tot * 12 / 14: acc += cost(rest[k]); k += 1
        return p1, rest[:k], rest[k:]

    def phaseA(par):
        cur, nxt = vS[par], vS[1-par]
        imm = STG * par
        mf = [qk(s, s, nxt) for s in range(12)]
        reads = [[] for _ in range(12)]
        for g in range(12):
            n = g + LA
            reads[g] = kread(n, n, imm) if n < 12 else vread(n, n - 12, imm)
        gaps = [[] for _ in range(12)]
        _, pa, _ = Esplit3(cur)
        spread(pa, 0, 11, gaps)
        if par == 1:
            for i in range(4): gaps[7 + i].append(I(f"v_xor_b32 v{vK[i]}, 0x{TOG:x}, v{vK[i]}"))
        gaps[10].append(I("s_sub_u32 s43, s43, 1"))
        return phase(mf, reads, gaps, 0)
    def phaseB(par, tail):
        cur, nxt = vS[par], vS[1-par]
        imm = STG * par
        tag = f"{'T' if tail else 'L'}{par}"
        mf = [pv(12 + i, i) for i in range(12)]
        reads = [[] for _ in range(12)]
        gaps = [[] for _ in range(12)]
        nimm = STG * (1 - par)
        for g in range(12):
            n = 12 + g + LA
            if n < 24: reads[g] = vread(n, n - 12, imm)
            else: reads[g] = vread(n, n - 24, nimm) if tail else kread(n, n - 24, nimm)
        first = 12 - LA
        pre = []
        if par == 1:
            pre = [I(f"v_xor_b32 v{vVe}, 0x{TOG:x}, v{vVe}"), I(f"v_xor_b32 v{vVo}, 0x{TOG:x}, v{vVo}")]
        reads[first] = pre + [I("s_barrier")] + reads[first]
        _, _, pb = Esplit3(cur)
        spread(pb, 0, 1, gaps)
        if not tail:
            p1, _, _ = Esplit3(nxt)
            spread(Mlist(nxt, tag), 2, 3, gaps)
            spread(p1, 4, 11, gaps)
        else:
            p1, _ = Ehalf(nxt)
            spread(masklist(nxt) + Mlist(nxt, tag), 2, 5, gaps)
            spread(p1, 6, 11, gaps)
        out = phase(mf, reads, gaps, 12)
        out += [I(f"s_cbranch_vccnz RARE2_{tag}"), I(f"RET2_{tag}:")]
        return out
    def phaseF(par):
        S = vS[1-par]; imm = STG * (1 - par)
        mf = [pv(24 + i, i) for i in range(12)]
        reads = [[] for _ in range(12)]
        for g in range(12):
            n = 24 + g + LA
            if n < 36: reads[g] = vread(n, n - 24, imm)
        gaps = [[] for _ in range(12)]
        _, p2 = Ehalf(S)
        spread(p2, 0, 4, gaps)
        fin = [I(f"v_mov_b32 v{vT1}, v{vL}"), I("s_nop 1"), I(f"v_permlane32_swap_b32 v{vL}, v{vT1}"), I(f"v_add_f32 v{vL}, v{vL}, v{vT1}"),
               I(f"v_rcp_f32 v{vF}, v{vL}")]
        spread(fin, 6, 8, gaps)
        return [I(f"FIN_{par}:"), I("s_nop 1")] + phase(mf, reads, gaps, 24)

    E = []
    a = lambda t, c="": E.append(I(t, c))
    a("s_load_dwordx8 s[4:11], s[0:1], 0")
    a("s_load_dwordx2 s[12:13], s[0:1], 32")
    if cfg.stamps:
        a("s_load_dwordx2 s[14:15], s[0:1], 48")
        a("s_memrealtime s[56:57]")
    if cfg.dbgst:
        a("s_load_dwordx2 s[14:15], s[0:1], 40")
        a("s_memrealtime s[56:57]")
    a("s_lshr_b32 s34, s2, 3"); a("s_and_b32 s33, s2, 7")
    a(f"s_cmp_ge_u32 s34, {NJ}"); a("s_cbranch_scc1 L_END")
    a("v_lshrrev_b32 v1, 6, v0"); a(f"v_and_b32 v{vLane}, 63, v0")
    a("s_mov_b32 m0, s34")
    a("v_readfirstlane_b32 s32, v1")
    for i, (n, s, L, b) in enumerate(jobs):
        a(f"s_mov_b32 s{58+i}, 0x{(s | (L << 12) | (b << 22)):x}")
    a("s_movrels_b32 s34, s58")
    a("s_and_b32 s35, s34, 0xfff", "seq start"); a("s_bfe_u32 s36, s34, 0xa000c", "L"); a("s_lshr_b32 s37, s34, 22", "b")
    a("s_add_u32 s38, s35, s36", "seq end")
    a("s_add_u32 s39, s36, 31"); a("s_lshr_b32 s39, s39, 5"); a("s_lshl_b32 s42, s37, 1"); a("s_add_u32 s40, s42, 2")
    a("s_min_u32 s39, s39, s40", "N")
    a("s_lshl_b32 s40, s37, 6"); a("s_add_u32 s40, s40, s35", "q0")
    a("s_mul_i32 s44, s40, 6144"); a("s_mul_i32 s40, s33, 768"); a("s_add_u32 s44, s44, s40", "Q/O offset of block, head pair")
    a("s_cmp_ge_u32 s32, 4"); a("s_cbranch_scc1 L_LOADER")

    P0 = []
    a = lambda t, c="": P0.append(I(t, c))
    a("s_lshr_b32 s45, s32, 1", "th"); a("s_and_b32 s46, s32, 1", "hh")
    a("s_add_u32 s40, s42, s45", "tile index"); a("s_lshl_b32 s47, s40, 5"); a("s_cmp_ge_u32 s47, s36"); a("s_cbranch_scc1 L_END")
    a("s_add_u32 s40, s40, 1", "N_w")
    a(f"s_mul_i32 s45, s45, {32*6144}"); a("s_mul_i32 s46, s46, 384"); a("s_add_u32 s44, s44, s45"); a("s_add_u32 s44, s44, s46")
    if cfg.prio: a(f"s_setprio {cfg.prio}")
    a(f"v_and_b32 v{vRow}, 31, v{vLane}"); a(f"v_lshrrev_b32 v{vH}, 5, v{vLane}"); a(f"v_bfe_u32 v{vX}, v{vLane}, 1, 3")
    a(f"v_mul_u32_u24 v{vT[0]}, 384, v{vRow}")
    a(f"v_xor_b32 v{vT[1]}, v{vH}, v{vX}"); a(f"v_lshl_add_u32 v{vT[1]}, v{vT[1]}, 4, v{vT[0]}", "K lane base")
    a(f"s_mul_i32 s45, s32, 12288"); a(f"s_add_u32 s45, s45, {QBASE}", "wave staging base")
    for i in range(4):
        a(f"v_xor_b32 v{vT[2+i]}, {i<<5}, v{vT[1]}")
    for i in range(4):
        a(f"v_add_u32 v{vK[i]}, 0x{TOG:x}, v{vT[2+i]}")
        a(f"v_add_u32 v{vT[2+i]}, s45, v{vT[2+i]}")
    a(f"v_bfe_u32 v{vT[6]}, v{vLane}, 2, 2", "r"); a(f"v_lshl_add_u32 v{vT[7]}, v{vH}, 2, v{vT[6]}", "4h+r")
    a(f"v_mul_u32_u24 v{vT[7]}, 384, v{vT[7]}")
    a(f"v_bfe_u32 v{vT[8]}, v{vLane}, 4, 1"); a(f"v_lshl_add_u32 v{vT[7]}, v{vT[8]}, 5, v{vT[7]}")
    a(f"v_and_b32 v{vT[8]}, 3, v{vLane}"); a(f"v_lshl_add_u32 v{vT[7]}, v{vT[8]}, 3, v{vT[7]}")
    a(f"v_bfe_u32 v{vT[8]}, v{vLane}, 3, 1", "y"); a(f"v_lshlrev_b32 v{vT[8]}, 6, v{vT[8]}")
    a(f"v_add_u32 v{vVe}, v{vT[7]}, v{vT[8]}"); a(f"v_sub_u32 v{vVo}, v{vT[7]}, v{vT[8]}")
    a(f"s_mov_b32 s{sC}, 0x{f32bits(math.log2(math.e) / math.sqrt(192)):08x}")
    a(f"v_mov_b32 v{vNeg}, 0xff800000"); a(f"v_mov_b32 v{vL}, 0")
    for r in range(16):
        g, i = r >> 2, r & 3
        lo = sum(1 << l for l in range(32) if 8*g + i > l); hi = sum(1 << l for l in range(32) if 8*g + 4 + i > l)
        a(f"s_mov_b32 s{sMask+2*r}, 0x{lo:x}"); a(f"s_mov_b32 s{sMask+2*r+1}, 0x{hi:x}")
    for i in range(96): a(f"v_mov_b32 v{vO+i}, 0")
    a("s_sub_u32 s43, s40, 2")
    a("s_waitcnt lgkmcnt(0)")
    a("s_mov_b32 s28, s12"); a("s_mov_b32 s29, s13"); a("s_mul_i32 s30, s38, 6144"); a("s_mov_b32 s31, 0x20000")
    a("s_barrier", "B_init: Q and K0 landed")
    if cfg.dbgst or cfg.stamps: a("s_memrealtime s[54:55]"); a("s_waitcnt lgkmcnt(0)")
    for s in range(12):
        if s < LA: P0 += kread(s + 12, s, STG)
        a(f"ds_read_b128 {vr(vQ+4*s,4)}, v{vT[2+s%4]} offset:{(s//4)*128}")
    if True:
        for s in range(12):
            P0.append(LW([vr(ring(12+s),4), vr(vQ+4*s,4)]))
            P0.append(qk(12 + s, s, vS[0]))
            if s + LA < 12: P0 += kread(12 + s + LA, s + LA, STG)
    for i in range(4): a(f"v_xor_b32 v{vK[i]}, 0x{TOG:x}, v{vK[i]}")
    a("s_cmp_eq_u32 s40, 1")
    a("s_barrier", "stage 0 landed")
    a("s_cbranch_scc1 L_ONE")
    P1 = []
    def m0list():
        o = Mlist(vS[0], None)
        o += [I(f"v_mov_b32 v{vT1}, v{vMx}"), I("s_nop 1"), I(f"v_permlane32_swap_b32 v{vMx}, v{vT1}"),
              I(f"v_max_f32 v{vMx}, v{vMx}, v{vT1}"), I(f"v_mul_f32 v{vM}, s{sC}, v{vMx}")]
        return o
    for s in range(LA): P1 += kread(s, s, 0)
    P1 += [I("s_nop 3")] + m0list() + Esplit3(vS[0])[0]
    ONE = [I("L_ONE:")]
    for i in range(LA): ONE += vread(24 + i, i, 0)
    ONE += masklist(vS[0]) + m0list() + Ehalf(vS[0])[0] + [I("s_branch FIN_1")]

    A0, A1 = phaseA(0), phaseA(1)
    B0, B1 = phaseB(0, False), phaseB(1, False)
    T0, T1 = phaseB(0, True), phaseB(1, True)
    F0, F1 = phaseF(0), phaseF(1)
    LOOP = [I("L_LOOP:")] + A0 + [I("s_cbranch_scc1 TAIL_0")] + B0 + A1 + [I("s_cbranch_scc1 TAIL_1")] + B1 + [I("s_branch L_LOOP")]
    TAIL1 = [I("TAIL_1:")] + T1 + F1 + [I("s_branch L_EPI")]
    TAIL0 = [I("TAIL_0:")] + T0 + F0

    EP = [I("L_EPI:")]
    a = lambda t, c="": EP.append(I(t, c))
    if cfg.dbgst or cfg.stamps: a("s_memrealtime s[52:53]"); a("s_waitcnt lgkmcnt(0)")
    a("s_cmp_eq_u32 s40, s39"); a("s_cbranch_scc1 L_NOXB"); a("s_barrier"); a("L_NOXB:")
    a(f"v_mul_u32_u24 v{vT[0]}, 384, v{vRow}"); a(f"v_lshl_add_u32 v{vT[0]}, v{vX}, 4, v{vT[0]}"); a(f"v_lshl_add_u32 v{vT[0]}, v{vH}, 3, v{vT[0]}")
    a(f"v_add_u32 v{vT[0]}, s45, v{vT[0]}")
    for b in range(1, 8): a(f"v_xor_b32 v{vT[b]}, {b<<4}, v{vT[0]}")
    a(f"v_lshlrev_b32 v{vT[8]}, 4, v{vLane}"); a(f"v_add_u32 v{vT[8]}, s45, v{vT[8]}")
    for c in range(24):
        dt, g = c // 4, c % 4; o = vO + 16*dt + 4*g
        a(f"v_pk_mul_f32 {vr(o,2)}, {vr(o,2)}, {vr(vF-1,2)} op_sel:[0,1] op_sel_hi:[1,1]")
        a(f"v_pk_mul_f32 {vr(o+2,2)}, {vr(o+2,2)}, {vr(vF-1,2)} op_sel:[0,1] op_sel_hi:[1,1]")
        a(f"v_cvt_pk_bf16_f32 v{o}, v{o}, v{o+1}"); a(f"v_cvt_pk_bf16_f32 v{o+1}, v{o+2}, v{o+3}")
        a(f"ds_write_b64 v{vT[c%8]}, {vr(o,2)} offset:{(c//8)*128}")
    for t in range(3):
        p, r, sl, x = vT[12], vT[13], vT[14], vT[15]
        a(f"v_add_u32 v{p}, {64*t}, v{vLane}"); a(f"v_mul_u32_u24 v{r}, 2731, v{p}"); a(f"v_lshrrev_b32 v{r}, 16, v{r}")
        a(f"v_mul_u32_u24 v{sl}, 24, v{r}"); a(f"v_sub_u32 v{sl}, v{p}, v{sl}")
        a(f"v_lshrrev_b32 v{x}, 1, v{r}"); a(f"v_xor_b32 v{sl}, v{sl}, v{x}")
        a(f"v_mul_u32_u24 v{r}, 6144, v{r}"); a(f"v_lshl_add_u32 v{vT[9+t]}, v{sl}, 4, v{r}")
        a(f"v_xor_b32 v{vT[16+t]}, 64, v{vT[9+t]}")
    a("s_waitcnt lgkmcnt(0)")
    for i in range(12): a(f"ds_read_b128 {vr(vQ+4*i,4)}, v{vT[8]} offset:{1024*i}")
    for i in range(12):
        jj, t = i // 3, i % 3
        if t == 0 and jj > 0: a(f"s_add_u32 s44, s44, {8*6144}")
        EP.append(LW([vr(vQ+4*i,4)]))
        a(f"buffer_store_dwordx4 {vr(vQ+4*i,4)}, v{vT[(16 if jj % 2 else 9)+t]}, s[28:31], s44 offen {cfg.stflag}")
    if cfg.stamps:
        a("s_waitcnt vmcnt(0)")
        a("s_memrealtime s[50:51]")
        a("s_mov_b32 s60, s14"); a("s_mov_b32 s61, s15"); a("s_mov_b32 s62, 0x1000000"); a("s_mov_b32 s63, 0x20000")
        a("s_lshl_b32 s45, s2, 2"); a("s_add_u32 s45, s45, s32"); a("s_lshl_b32 s45, s45, 4")
        a("s_waitcnt lgkmcnt(0)")
        a("v_mov_b32 v20, s56"); a("v_mov_b32 v21, s54"); a("v_mov_b32 v22, s52"); a("v_mov_b32 v23, s50")
        a("v_mov_b32 v24, 0")
        a("s_mov_b64 exec, 1")
        a("buffer_store_dwordx4 v[20:23], v24, s[60:63], s45 offen")
    if cfg.dbgst:
        a("s_waitcnt vmcnt(0)")
        a("s_memrealtime s[50:51]")
        a("s_mov_b32 s60, s14"); a("s_mov_b32 s61, s15"); a("s_mov_b32 s62, 256"); a("s_mov_b32 s63, 0x20000")
        a("s_mov_b32 s45, 0x1000")
        for i, w in enumerate(cfg.dbgw):
            a(f"s_cmp_eq_u32 s2, {w}"); a(f"s_cselect_b32 s45, {16*i}, s45")
        a("s_cmp_eq_u32 s32, 0"); a("s_cselect_b32 s45, s45, 0x1000")
        a("s_waitcnt lgkmcnt(0)")
        a("v_mov_b32 v20, s56"); a("v_mov_b32 v21, s54"); a("v_mov_b32 v22, s52"); a("v_mov_b32 v23, s50")
        a("v_mov_b32 v24, 0")
        a("s_mov_b64 exec, 1")
        a("buffer_store_dwordx4 v[20:23], v24, s[60:63], s45 offen")
    a("L_END:"); a("s_endpgm")

    LD = [I("L_LOADER:")]
    a = lambda t, c="": LD.append(I(t, c))
    a("s_sub_u32 s32, s32, 4", "lw")
    a("s_and_b32 s45, s32, 1"); a("s_lshl_b32 s45, s45, 2", "4*(lw&1)"); a("s_lshl_b32 s46, s32, 3", "8*lw")
    vq, vk, vv = [20, 21, 22], [23, 24, 25], [26, 27, 28]
    for t in range(3):
        p, r, sl, x, y = 1, 2, 3, 4, 5
        a(f"v_add_u32 v{p}, {64*t}, v{vLane}"); a(f"v_mul_u32_u24 v{r}, 2731, v{p}"); a(f"v_lshrrev_b32 v{r}, 16, v{r}")
        a(f"v_mul_u32_u24 v{sl}, 24, v{r}"); a(f"v_sub_u32 v{sl}, v{p}, v{sl}")
        a(f"v_lshrrev_b32 v{x}, 1, v{r}")
        a(f"v_and_b32 v{y}, 1, v{x}"); a(f"v_lshlrev_b32 v{y}, 2, v{y}"); a(f"v_xor_b32 v{y}, v{sl}, v{y}", "V slot")
        a(f"v_xor_b32 v{x}, s45, v{x}"); a(f"v_xor_b32 v{x}, v{sl}, v{x}", "K/Q slot")
        a(f"v_add_u32 v{r}, s46, v{r}")
        a(f"v_mul_u32_u24 v{p}, 3072, v{r}")
        if t: a(f"v_subrev_u32 v{p}, {1024*t}, v{p}")
        a(f"v_lshl_add_u32 v{vk[t]}, v{x}, 4, v{p}"); a(f"v_lshl_add_u32 v{vv[t]}, v{y}, 4, v{p}")
        a(f"v_mul_u32_u24 v{p}, 6144, v{r}")
        if t: a(f"v_subrev_u32 v{p}, {1024*t}, v{p}")
        a(f"v_lshl_add_u32 v{vq[t]}, v{x}, 4, v{p}")
    a("s_mul_i32 s45, s35, 3072"); a("s_mul_i32 s46, s33, 384"); a("s_add_u32 s45, s45, s46", "K offset"); a("s_mov_b32 s46, s45", "V offset")
    a("s_mul_i32 s49, s32, 3072", "lw lds offset"); a("s_mov_b32 s50, 0x7fff0000")
    a("s_mov_b32 s47, s39", "K tiles remaining"); a("s_mov_b32 s48, s39", "V tiles remaining")
    a("s_waitcnt lgkmcnt(0)")
    for base, lo, mul in ((16, 6, 3072), (20, 8, 3072), (24, 4, 6144)):
        a(f"s_mov_b32 s{base}, s{lo}"); a(f"s_mov_b32 s{base+1}, s{lo+1}"); a(f"s_mul_i32 s{base+2}, s38, {mul}"); a(f"s_mov_b32 s{base+3}, 0x20000")
    def issue(which, m0expr):
        o = []
        off, rem, srd, vv_ = (45, 47, 16, vk) if which == "K" else (46, 48, 20, vv)
        o += m0expr
        o += [I(f"s_cmp_gt_i32 s{rem}, 0"), I(f"s_cselect_b32 s51, s{off}, s50")]
        for t in range(3):
            o.append(I(f"buffer_load_dwordx4 v{vv_[t]}, s[{srd}:{srd+3}], s51 offen offset:{1024*t} lds"))
        o += [I(f"s_add_u32 s{off}, s{off}, {32*3072}"), I(f"s_sub_i32 s{rem}, s{rem}, 1")]
        return o
    LD += issue("K", [I(f"s_add_u32 m0, s49, {3*STG}")])
    for u in range(4):
        a(f"s_add_u32 m0, s49, {QBASE + u*12288}")
        a(f"s_add_u32 s51, s44, {(u >> 1)*32*6144 + (u & 1)*384}")
        for t in range(3): a(f"buffer_load_dwordx4 v{vq[t]}, s[24:27], s51 offen offset:{1024*t} lds")
    for st in range(3):
        LD += issue("K", [I(f"s_add_u32 m0, s49, {st*STG}")])
        LD += issue("V", [I(f"s_add_u32 m0, s49, {st*STG + VOFF}")])
    a(f"s_add_u32 s52, s49, {3*STG}", "next slot"); a(f"s_add_u32 s53, s49, {4*STG}")
    a("s_sub_u32 s43, s39, 1")
    a("s_waitcnt vmcnt(18)"); a("s_barrier"); a("s_waitcnt vmcnt(12)"); a("s_barrier")
    a("s_cmp_eq_u32 s43, 0"); a("s_cbranch_scc1 L_END2")
    a("L_LDLOOP:")
    a("s_waitcnt vmcnt(6)"); a("s_barrier")
    LD += issue("K", [I("s_mov_b32 m0, s52")])
    LD += issue("V", [I(f"s_add_u32 m0, s52, {VOFF}")])
    a(f"s_add_u32 s52, s52, {STG}"); a("s_cmp_eq_u32 s52, s53"); a("s_cselect_b32 s52, s49, s52")
    a("s_sub_u32 s43, s43, 1"); a("s_cmp_lg_u32 s43, 0"); a("s_cbranch_scc1 L_LDLOOP")
    a("L_END2:"); a("s_endpgm")

    R = []
    for tag in ("L0", "L1", "T0", "T1"): R += rare1(tag) + rare2(tag)

    def lin(*bl):
        o = []
        for b in bl: o += b
        return o
    paths = [lin(E, P0, P1, A0, B0, A1, B1, A0, B0, A1, T1, F1, EP), lin(E, P0, P1, A0, T0, F0, EP), lin(E, P0, ONE, F1, EP),
             lin(E, P0, P1, A0, B0, A1, B1, A0, T0, F0, EP), lin(E, LD)]
    resolve_lgkm(paths)
    for p in paths[:4]:
        ver = [0] * 8; use = [0] * 8
        cnt = [0, 0]
        for ins in p:
            if ins.kind == "valu" and ins.mn.startswith("v_cvt_pk") and vP <= int(ins.ops[0][1:]) < vP + 8:
                k = int(ins.ops[0][1:]) - vP
                assert cnt[k // 4] == 6 * ver[k], ("P overwritten early", ins.text)
                ver[k] += 1
            if ins.kind == "mfma" and ("v", vP) in ins.B or ins.kind == "mfma" and ("v", vP + 4) in ins.B:
                h = 0 if ("v", vP) in ins.B else 1
                for k in range(4 * h, 4 * h + 4): assert ver[k] == cnt[h] // 6 + 1, ("P not ready", ins.text)
                cnt[h] += 1
    errs = []
    for i, p in enumerate(paths): errs += check_hazards(p, f"path{i}")
    def splice(p):
        o = []
        for ins in p:
            o.append(ins)
            if ins.kind == "branch" and "RARE" in ins.text:
                tg = ins.text.split()[-1]; k, tag = tg.split("_")
                o += (rare1(tag) if k == "RARE1" else rare2(tag))[1:]
        return o
    for i, p in enumerate(paths[:4]): errs += check_hazards(splice(p), f"rare{i}")
    for e in dict.fromkeys(errs): print("HAZARD", e)
    allc = lin(E, P0, P1, LOOP, TAIL1, TAIL0, EP, ONE, LD, R)
    body = "\n".join(str(i) for i in allc) + "\n"
    return wrap(body, 8 * NJ, 512, QBASE + 4 * 12288, vgpr=256, sgpr=100), errs

if __name__ == "__main__":
    cfg = Cfg()
    out = sys.argv[1]
    for kv in sys.argv[2:]:
        k, v = kv.split("="); setattr(cfg, k, type(getattr(cfg, k))(eval(v)) if not isinstance(getattr(cfg, k), str) else v)
    txt, errs = gen(cfg)
    open(out, "w").write(txt)
    print("wrote", out, "hazards:", len(errs))
```
